```python
import torch

def _softmax(x, axis=-1):
    return torch.softmax(x, dim=axis)
def _gelu(x):
    return torch.nn.functional.gelu(x, approximate="tanh")
def _silu(x):
    return torch.nn.functional.silu(x)
def _sigmoid(x):
    return torch.sigmoid(x)
def _layernorm(x, axis=-1, eps=1e-5):
    m = x.mean(dim=axis, keepdim=True)
    v = x.var(dim=axis, keepdim=True, unbiased=False)
    return (x - m) / torch.sqrt(v + eps)
def _scatter_add(tgt, idx, src, axis=0):
    return tgt.clone().index_add_(axis, idx, src)
def _segment_sum(src, seg, n):
    out = torch.zeros((n,) + src.shape[1:], dtype=src.dtype)
    return out.index_add_(0, seg, src)
def _pad(x, pw):
    flat = tuple(v for pair in reversed(pw) for v in pair)
    return torch.nn.functional.pad(x, flat)

kernel_name = 'sequential_preLN__softmax_full_mha__dense_activation_gelu__prompt'

def setup_inputs():

    _w = (lambda a: (lambda t: t.to(torch.bfloat16) if t.is_floating_point() else t)(torch.as_tensor(a)))
    def _A_setup():
        B, S, D = 1, 2048, 512
        return {
            "x": _w((lambda *s: torch.randn(*s, dtype=torch.bfloat16) * 0.05)(B, S, D)),
            "wqkv": _w((lambda *s: torch.randn(*s, dtype=torch.bfloat16) * 0.05)(D, 3 * D)),
            "wo": _w((lambda *s: torch.randn(*s, dtype=torch.bfloat16) * 0.05)(D, D)),
        }
    _A_in = _A_setup()

    def _B_setup():
        B, S, D, F = 1, 2048, 512, 1376
        return {
            "x": _w((lambda *s: torch.randn(*s, dtype=torch.bfloat16) * 0.05)(B, S, D)),
            "w1": _w((lambda *s: torch.randn(*s, dtype=torch.bfloat16) * 0.8)(D, F) * (D ** -0.5)),
            "b1": _w((lambda *s: torch.randn(*s, dtype=torch.bfloat16) * 0.2)(F) * 0.01),
            "w2": _w((lambda *s: torch.randn(*s, dtype=torch.bfloat16) * 0.2)(F, D) * (F ** -0.5)),
            "b2": _w((lambda *s: torch.randn(*s, dtype=torch.bfloat16) * 0.2)(D) * 0.01),
        }
    _B_in = _B_setup()

    return {
        "A_x": _A_in["x"],
        "A_wqkv": _A_in["wqkv"],
        "A_wo": _A_in["wo"],
        "B_x": _B_in["x"],
        "B_w1": _B_in["w1"],
        "B_b1": _B_in["b1"],
        "B_w2": _B_in["w2"],
        "B_b2": _B_in["b2"],
    }

def reference(A_x, A_wqkv, A_wo, B_x, B_w1, B_b1, B_w2, B_b2):
    def _A_ref(x, wqkv, wo):
        B, S, D = x.shape
        H = 32; Dh = D // H
        qkv = (lambda x, *d: x.permute(*d))((x @ wqkv).reshape(B, S, 3, H, Dh), 2, 0, 3, 1, 4)
        q, k, v = qkv[0], qkv[1], qkv[2]
        scale = Dh ** -0.5
        scores = torch.einsum("bhqd,bhkd->bhqk", q, k) * scale
        p = _softmax(scores, axis=-1)
        o = torch.einsum("bhqk,bhkd->bhqd", p, v)
        return (lambda x, *d: x.permute(*d))(o, 0, 2, 1, 3).reshape(B, S, D) @ wo

    def _B_ref(x, w1, b1, w2, b2):
        h = torch.einsum("bsd,df->bsf", x, w1) + b1
        h = _gelu(h)
        return torch.einsum("bsf,fd->bsd", h, w2) + b2

    x = A_x
    h = x + _A_ref(_layernorm(x, axis=-1), A_wqkv, A_wo)
    h2 = h + _B_ref(_layernorm(h, axis=-1), B_w1, B_b1, B_w2, B_b2)
    return h2
```

```python
import re

TRANS = ("v_exp_f32", "v_log_f32", "v_rcp_f32", "v_rsq_f32", "v_sqrt_f32", "v_sin_f32", "v_cos_f32")


def regs_of(op):
    op = op.strip()
    if op.startswith("-"):
        op = op[1:]
    if op.startswith("abs(") and op.endswith(")"):
        op = op[4:-1]
    if op.startswith("|") and op.endswith("|"):
        op = op[1:-1]
    m = re.fullmatch(r"([vsa])(\d+)", op)
    if m:
        return {(m.group(1), int(m.group(2)))}
    m = re.fullmatch(r"([vsa])\[(\d+):(\d+)\]", op)
    if m:
        return {(m.group(1), i) for i in range(int(m.group(2)), int(m.group(3)) + 1)}
    if op == "vcc":
        return {("s", "vcc_lo"), ("s", "vcc_hi")}
    if op in ("vcc_lo", "vcc_hi"):
        return {("s", op)}
    if op == "exec":
        return {("s", "exec_lo"), ("s", "exec_hi")}
    if op in ("exec_lo", "exec_hi"):
        return {("s", op)}
    if op == "m0":
        return {("s", "m0")}
    return set()


class Ins:
    def __init__(self, text):
        self.text = text
        t = text.split(";")[0].strip()
        self.label = None
        self.op = None
        self.kind = "none"
        self.w = set()
        self.r = set()
        self.states = 0
        if not t or t.startswith("."):
            if t.endswith(":"):
                self.label = t[:-1]
            return
        if t.endswith(":"):
            self.label = t[:-1]
            return
        parts = t.split(None, 1)
        self.op = op = parts[0]
        rest = parts[1] if len(parts) > 1 else ""
        ops = []
        depth = 0
        cur = ""
        for ch in rest:
            if ch in "[(":
                depth += 1
            if ch in "])":
                depth -= 1
            if ch == "," and depth == 0:
                ops.append(cur.strip())
                cur = ""
            else:
                cur += ch
        if cur.strip():
            ops.append(cur.strip())
        mods = ""
        if ops:
            last = ops[-1].split(None, 1)
            ops[-1] = last[0]
            mods = last[1] if len(last) > 1 else ""
        self.ops = ops
        self.mods = mods
        self.states = 1
        R = [regs_of(o) for o in ops]
        base = re.sub(r"_(e32|e64|sdwa|dpp)$", "", op)
        self.base = base
        if op == "s_nop":
            self.kind = "nop"
            self.states = int(ops[0], 0) + 1
        elif op.startswith("v_mfma"):
            self.kind = "mfma"
            self.w = R[0]
            self.A, self.B, self.C = R[1], R[2], R[3]
            self.r = R[1] | R[2] | R[3]
            self.passes = 8 if "32x32" in op else 4
        elif op.startswith("v_smfmac"):
            self.kind = "mfma"
            self.w = R[0]
            self.A, self.B, self.C = R[1] | R[3], R[2], R[0]
            self.r = R[0] | R[1] | R[2] | R[3]
            self.passes = 8 if "32x32" in op else 4
        elif op.startswith("v_"):
            self.kind = "valu"
            if base.startswith("v_permlane"):
                self.w = R[0] | R[1]
                self.r = R[0] | R[1]
            elif base in ("v_add_co_u32", "v_sub_co_u32", "v_addc_co_u32"):
                self.w = R[0] | R[1]
                self.r = set().union(*R[2:])
            else:
                self.w = R[0]
                self.r = set().union(*R[1:]) if len(R) > 1 else set()
                if base.startswith("v_dot2c") or base.startswith("v_fmac") or base.startswith("v_writelane"):
                    self.r |= R[0]
                if base.startswith("v_cmpx"):
                    self.w |= regs_of("exec")
            self.trans = base in TRANS
            self.dl = base.startswith("v_dot")
            self.dpp = "dpp" in op or "row_" in mods or "quad_perm" in mods
        elif op.startswith("ds_"):
            self.kind = "ds"
            if op.startswith("ds_read") or "_rtn" in op or "permute" in op or "swizzle" in op:
                self.w = R[0]
                self.r = set().union(*R[1:])
            else:
                self.r = set().union(*R)
        elif op.startswith("buffer_") or op.startswith("global_"):
            self.kind = "vmem"
            self.ldsdma = re.search(r"\blds\b", mods) is not None or "load_lds" in op
            self.wide_store = False
            if op in ("buffer_wbl2", "buffer_inv"):
                pass
            elif "load" in op and not self.ldsdma:
                self.w = R[0]
                self.r = set().union(*R[1:])
            elif "atomic" in op and "sc0" in mods:
                self.w = R[0]
                self.r = set().union(*R)
            else:
                self.r = set().union(*R)
                if "store" in op and ("x3" in op or "x4" in op):
                    self.wide_store = True
                    self.sdata = R[0] if op.startswith("buffer_") else R[1]
            if self.ldsdma:
                self.r |= regs_of("m0")
        elif op.startswith("s_"):
            self.kind = "salu"
            if op.startswith("s_cmp") or op.startswith("s_bitcmp") or op.startswith("s_cbranch") or op in (
                    "s_branch", "s_waitcnt", "s_barrier", "s_endpgm", "s_setprio", "s_sleep", "s_setpc_b64"):
                self.r = set().union(*R) if R else set()
            else:
                self.w = R[0] if R else set()
                self.r = set().union(*R[1:]) if len(R) > 1 else set()
                if "saveexec" in op:
                    self.w |= regs_of("exec")
        else:
            raise ValueError("unknown instruction: " + text)


def vonly(s):
    return {x for x in s if x[0] in "va"}


def sonly(s):
    return {x for x in s if x[0] == "s"}


def need(p, c):
    n = 0
    if p.kind == "valu":
        wv, ws = vonly(p.w), sonly(p.w)
        if c.kind == "mfma" and wv & c.r:
            n = max(n, 3 if p.dl else 2)
        if c.kind == "mfma" and ws & regs_of("exec"):
            n = max(n, 4)
        if c.kind == "valu":
            if p.trans and (wv & c.r) and not c.trans:
                n = max(n, 1)
            if p.dl and (wv & (c.r | c.w)):
                if c.base != p.base:
                    n = max(n, 3)
                else:
                    srcab = set().union(*[regs_of(o) for o in c.ops[1:3]])
                    if wv & srcab:
                        n = max(n, 3)
            if ws & c.r:
                n = max(n, 2)
                if c.base in ("v_readlane_b32", "v_writelane_b32"):
                    n = max(n, 4)
            if c.base == "v_cndmask_b32" and len(c.ops) == 3 and ws & regs_of("vcc"):
                n = max(n, 2)
            if c.base in ("v_readlane_b32", "v_readfirstlane_b32") and wv & c.r:
                n = max(n, 1)
            if c.base.startswith("v_permlane") and wv & c.r:
                n = max(n, 2)
            if c.dpp and wv & c.r:
                n = max(n, 2)
        if c.kind in ("vmem", "ds") and p.dl and (wv & c.r):
            n = max(n, 3)
        if c.kind in ("vmem", "ds") and p.trans and (wv & c.r):
            n = max(n, 1)
        if c.kind == "vmem" and ws & c.r:
            n = max(n, 5)
        if c.kind == "salu" and ws & c.r:
            n = max(n, 1)
    elif p.kind == "mfma":
        big = {8: 12, 4: 8}[p.passes]
        ovl = {8: 10, 4: 6}[p.passes]
        war = {8: 7, 4: 3}[p.passes]
        if c.kind == "mfma":
            if p.w & (c.A | c.B):
                n = max(n, big)
            if p.w & c.C and not (p.w == c.C and p.passes == c.passes):
                n = max(n, ovl)
        elif c.kind == "valu":
            if p.w & (c.r | c.w):
                n = max(n, big)
            if p.C & c.w:
                n = max(n, war)
        elif c.kind in ("vmem", "ds"):
            if p.w & (c.r | c.w):
                n = max(n, big)
    elif p.kind == "salu":
        if ("s", "m0") in p.w and c.kind == "vmem" and c.ldsdma:
            n = max(n, 1)
    elif p.kind == "vmem":
        if p.wide_store:
            if c.kind in ("valu", "mfma") and p.sdata & c.w:
                n = max(n, 2)
            elif p.sdata & c.w:
                n = max(n, 1)
    return n


def pad_hazards(lines, verbose=False):
    out = []
    window = []
    npad = 0
    for ln in lines:
        I = Ins(ln)
        if I.op is None:
            out.append(I)
            continue
        dist = 0
        req = 0
        for p in reversed(window):
            n = need(p, I)
            if n - dist > req:
                req = n - dist
            dist += p.states
            if dist >= 20:
                break
        if req > 0:
            nop = Ins(f"s_nop {req - 1}")
            out.append(nop)
            window.append(nop)
            npad += 1
            if verbose:
                print("pad", req, "before", ln)
        out.append(I)
        window.append(I)
        if I.op in ("s_branch", "s_endpgm", "s_setpc_b64"):
            window = []
        if len(window) > 40:
            window = window[-30:]
    labels = {I.label: i for i, I in enumerate(out) if I.label}
    for i, I in enumerate(out):
        if I.op and (I.op.startswith("s_cbranch") or I.op == "s_branch" or I.op == "s_call_b64"):
            tgt = I.ops[-1]
            if tgt not in labels:
                raise ValueError("unknown label " + tgt)
            before = []
            k = i
            while k >= 0 and len(before) < 16:
                if out[k].op:
                    if k != i and out[k].op in ("s_branch", "s_endpgm", "s_setpc_b64"):
                        break
                    before.append(out[k])
                k -= 1
            before.reverse()
            k = labels[tgt]
            cnt = 0
            win = list(before)
            while k < len(out) and cnt < 16:
                c = out[k]
                if c.op:
                    dist = 0
                    for idx in range(len(win) - 1, -1, -1):
                        p = win[idx]
                        if idx < len(before) and need(p, c) > dist:
                            raise ValueError(f"hazard across branch {I.text} : {p.text} -> {c.text}")
                        dist += p.states
                    win.append(c)
                    cnt += 1
                    if c.op in ("s_branch", "s_endpgm", "s_setpc_b64"):
                        break
                k += 1
    return [I.text for I in out], npad


class K:
    def __init__(self):
        self.L = []
        self.vm = 0
        self.lg = 0
        self.tail = []
        self.uid = 0

    def e(self, txt):
        for ln in txt.split("\n"):
            ln = ln.strip()
            if ln:
                self.L.append(ln)

    def label(self, name):
        self.L.append(name + ":")

    def newlabel(self, p="L"):
        self.uid += 1
        return f"{p}_{self.uid}"

    def vmem(self, txt):
        self.e(txt)
        self.vm += 1
        return self.vm

    def lds(self, txt):
        self.e(txt)
        self.lg += 1
        return self.lg

    def wait(self, vm=None, lg=None):
        parts = []
        if vm is not None:
            n = 0 if vm == "all" else min(63, self.vm - vm)
            parts.append(f"vmcnt({n})")
        if lg is not None:
            n = 0 if lg == "all" else min(15, self.lg - lg)
            parts.append(f"lgkmcnt({n})")
        self.e("s_waitcnt " + " ".join(parts))


def vr(a, n=1):
    return f"v{a}" if n == 1 else f"v[{a}:{a + n - 1}]"


def sr(a, n=1):
    return f"s{a}" if n == 1 else f"s[{a}:{a + n - 1}]"
```

```python
from asmlib import vr


def bind(g):
    globals().update({n: v for n, v in g.items() if not n.startswith("__")})


sT1, sFT1 = 44, 45
W2_P1 = 18


def WSD():
    return f"s[{SWS}:{SWS + 3}]"


def attn_extras():
    ex = {}
    st = {}

    def flags_issue():
        e(f"s_lshr_b32 s{s0}, s{sJ}, 2")
        e(f"s_lshl3_add_u32 s{sT1}, s{sXCD}, s{s0}")
        e(f"s_and_b32 s{s0}, s{sJ}, 3")
        e(f"s_lshl2_add_u32 s{sFT1}, s{s0}, s{sT}")
        e(f"s_mov_b32 s{s0}, {WS_FP}")
        e(f"s_mov_b32 s{s1}, {WS_FP + 4096}")
        for i in range(6):
            st["f"] = k.vmem(f"buffer_load_dwordx4 {vr(WOR + 4 * i, 4)}, v{vKA}, {WSD()}, s{s0 if i < 4 else s1} offen offset:{(i & 3) * 1024} sc1")

    def flags_check():
        k.wait(vm=st["f"])
        pack_cmp()
        e("s_cbranch_scc0 L_pk_stub")
        k.label("L_pk_ret")

    def wo_issue(part):
        def f():
            if part == 0:
                e(f"s_lshl_b32 s{s0}, s{sF}, 8")
                e(f"v_xor_b32 v7, s{s0}, v{vKA}")
                e(f"s_lshl1_add_u32 s{s5_}, s{sFT1}, s{sF}")
                e(f"s_lshl_b32 s{s5_}, s{s5_}, 14")
                e(f"s_add_u32 s{s5_}, s{s5_}, {WS_WO}")
            else:
                e(f"s_add_u32 s{s5_}, s{s5_}, 4096")
            for i in range(4):
                k.vmem(f"buffer_load_dwordx4 {vr(WOR + 16 * part + 4 * i, 4)}, v7, {WSD()}, s{s5_} offen offset:{i * 1024} sc1")
        return f

    def w1_issue(part):
        def f():
            if part == 0:
                e(f"s_mul_i32 s{s4_}, s{sWv}, 12288")
                e(f"s_mul_i32 s{s5_}, s{sHP}, 98304")
                e(f"s_add_u32 s{s5_}, s{s5_}, s{s4_}")
                e(f"s_add_u32 s{s5_}, s{s5_}, {WS_W1}")
            else:
                e(f"s_add_u32 s{s5_}, s{s5_}, 4096")
            e(f"s_add_u32 m0, s{s4_}, {W1L + part * 4096}")
            for i in range(4):
                k.vmem(f"buffer_load_dwordx4 v{vKA}, {WSD()}, s{s5_} offen offset:{i * 1024} sc1 lds")
        return f

    def xres_issue():
        e(f"v_and_b32 v7, 31, v{vL}")
        e(f"v_lshlrev_b32 v7, 10, v7")
        e(f"v_lshrrev_b32 v{vXRES}, 5, v{vL}")
        e(f"v_lshl_add_u32 v7, v{vXRES}, 3, v7")
        e(f"s_lshl1_add_u32 s{s0}, s{sFT1}, s{sF}")
        e(f"s_lshl_b32 s{s0}, s{s0}, 5")
        e(f"s_lshl_b32 s{s1}, s{sT1}, 15")
        e(f"s_add_u32 s{s0}, s{s0}, s{s1}")
        k.vmem(f"buffer_load_dwordx2 {vr(vXRES, 2)}, v7, s[{SX}:{SX + 3}], s{s0} offen")
        k.vmem(f"buffer_load_dwordx2 {vr(vXRES + 2, 2)}, v7, s[{SX}:{SX + 3}], s{s0} offen offset:16")

    ex[(6, 1)] = flags_issue
    ex[(7, 2)] = flags_check
    for p in range(4):
        ex[(8 + (p >> 1), 1 + (p & 1))] = wo_issue(p)
    ex[(10, 1)] = w1_issue(0)
    ex[(10, 2)] = w1_issue(1)
    ex[(11, 1)] = w1_issue(2)
    ex[(11, 2)] = xres_issue
    return ex


def pack_cmp():
    for i in range(12):
        e(f"v_cmp_eq_u64 vcc, s[{sTAG}:{sTAG + 1}], {vr(WOR + 2 * i, 2)}")
        if i == 0:
            e(f"s_mov_b64 s[{s2_}:{s2_ + 1}], vcc")
        else:
            e(f"s_and_b64 s[{s2_}:{s2_ + 1}], s[{s2_}:{s2_ + 1}], vcc")
    e(f"s_cmp_eq_u64 s[{s2_}:{s2_ + 1}], -1")


def routines():
    k.label("L_pk_stub")
    e(f"s_mov_b32 s{s0}, {WS_FP}")
    e(f"s_mov_b32 s{s1}, {WS_FP + 4096}")
    for i in range(6):
        e(f"buffer_load_dwordx4 {vr(WOR + 4 * i, 4)}, v{vKA}, {WSD()}, s{s0 if i < 4 else s1} offen offset:{(i & 3) * 1024} sc1")
    e("s_waitcnt vmcnt(0)")
    e(f"s_add_u32 s{sABORT}, s{sABORT}, 1")
    e(f"s_cmp_gt_u32 s{sABORT}, 0x20000")
    e("s_cbranch_scc1 L_pk_ret")
    pack_cmp()
    e("s_cbranch_scc0 L_pk_stub")
    e("s_branch L_pk_ret")


def all_set():
    e("s_cmp_eq_u64 vcc, -1")


def tau(n):
    return 3 * n if n < 15 else (3 * (n - 15) + 1 if n < 29 else 3 * (n - 29) + 2)


def slot(n):
    return 102400 + 4096 * n if n < 15 else (4096 * (n - 15) if n < 40 else 102400 + 4096 * (n - 40))


A3 = 84
AC3 = 24
B3 = 56
sW2B = 26


def w2_issue(n0, n1):
    tok = None
    for n in range(n0, n1):
        e(f"s_add_u32 s{s0}, s{sW2B}, {tau(n) * 2048}")
        tok = k.vmem(f"buffer_load_dwordx4 {vr(A3 + 4 * n, 4)}, v{vKA}, {WSD()}, s{s0} offen sc1")
    return tok


def c1(otok):
    AC, BR = 24, 40
    e("s_barrier")
    e(f"s_lshl3_add_u32 s{s4_}, s{sT1}, s{sWv}")
    e(f"s_lshl_b32 s{s0}, s{s4_}, 9")
    e(f"s_add_u32 s{s0}, s{s0}, {WS_FO}")
    e(f"v_and_b32 v4, 3, v{vL}")
    e(f"v_lshl_add_u32 v4, v4, 7, s{s0}")
    e(f"s_lshl_b32 s{s4_}, s{s4_}, 12")
    e(f"s_add_u32 s{s4_}, s{s4_}, {WS_O}")
    e(f"s_lshl_b32 s{s0}, s{sWv}, 12")
    e(f"s_add_u32 m0, s{s0}, {OST}")
    for j in range(4):
        e(f"v_lshlrev_b32 v{AC + 2 * j}, 16, v{vXRES + j}")
        e(f"v_and_b32 v{AC + 2 * j + 1}, 0xffff0000, v{vXRES + j}")
    for r in range(8, 16):
        e(f"v_mov_b32 v{AC + r}, 0")
    e(f"s_lshl_b32 s{s0}, s{sF}, 14")
    e(f"s_add_u32 s{s0}, s{s0}, {OST}")
    e(f"v_add_u32 v5, s{s0}, v{vKA}")
    e(f"s_lshl_b32 s{s0}, s{sWv}, 11")
    e(f"s_add_u32 s{s1}, s{s0}, {C1X}")
    e(f"v_add_u32 v6, s{s1}, v{vKA}")
    e(f"s_xor_b32 s{s0}, s{s0}, 8192")
    e(f"s_add_u32 s{s1}, s{s0}, {C1X}")
    e(f"v_add_u32 v7, s{s1}, v{vKA}")
    e(f"s_and_b32 s{s0}, s{sJ}, 7")
    e(f"s_and_b32 s{s1}, s{sT}, 1")
    e(f"s_lshl1_add_u32 s{s0}, s{s0}, s{s1}")
    e(f"s_mul_i32 s{s0}, s{s0}, 86")
    e(f"s_lshr_b32 s{s1}, s{sT}, 1")
    e(f"s_add_u32 s{s0}, s{s0}, s{s1}")
    e(f"s_lshl_b32 s{s0}, s{s0}, 10")
    e(f"s_add_u32 s{sW2B}, s{s0}, {WS_W2}")
    k.wait(vm=otok)
    flag_store(vOFA, vTAG)
    stamp("o_flag")
    poll(4, vPT, all_set, "o")
    stamp("o_seen")
    for i in range(4):
        dt = k.vmem(f"buffer_load_dwordx4 v{vKA}, {WSD()}, s{s4_} offen offset:{i * 1024} sc1 lds")
    e(f"s_cmp_eq_u32 s{sF}, 0")
    e("s_cbranch_scc1 L_c1_f0")
    w2_issue(0, W2_P1)
    k.wait(vm=dt)
    e("s_branch L_c1_go")
    k.label("L_c1_f0")
    k.wait(vm="all")
    k.label("L_c1_go")
    e("s_barrier")
    stamp("o_landed")
    LA = 8
    toks = {}

    def rd(i):
        toks[i] = k.lds(f"ds_read_b128 {vr(BR + 4 * (i % 10), 4)}, v5 offset:{i * 1024}")
    for i in range(LA):
        rd(i)
    e(f"s_lshl1_add_u32 s{s0}, s{sFT1}, s{sF}")
    e(f"s_lshl_b32 s{s1}, s{sT1}, 5")
    e(f"s_add_u32 s{s0}, s{s0}, s{s1}")
    e(f"s_lshl_b32 s{s1}, s{s0}, 7")
    e(f"s_add_u32 s{s1}, s{s1}, {WS_FH}")
    e(f"v_mov_b32 v{vOFA}, s{s1}")
    e(f"s_lshl_b32 s{s0}, s{s0}, 10")
    e(f"s_add_u32 s{s4_}, s{s0}, {WS_H}")
    for i in range(16):
        k.wait(lg=toks[i])
        e(f"v_mfma_f32_32x32x16_bf16 {vr(AC, 16)}, {vr(WOR + 4 * i, 4)}, {vr(BR + 4 * (i % 10), 4)}, {vr(AC, 16)}")
        if i + LA < 16:
            rd(i + LA)
    k.lds(f"ds_write_b128 v7, {vr(AC + 8, 4)}")
    k.lds(f"ds_write_b128 v7, {vr(AC + 12, 4)} offset:1024")
    k.wait(lg="all")
    e("s_barrier")
    t1 = k.lds(f"ds_read_b128 {vr(BR, 4)}, v6")
    t2 = k.lds(f"ds_read_b128 {vr(BR + 4, 4)}, v6 offset:1024")
    k.wait(lg=t1)
    for r in range(0, 8, 2):
        if r == 4:
            k.wait(lg=t2)
        e(f"v_pk_add_f32 {vr(AC + r, 2)}, {vr(AC + r, 2)}, {vr(BR + r, 2)}")
    for r in range(4):
        e(f"v_cvt_pk_bf16_f32 v{vXRES + r}, v{AC + 2 * r}, v{AC + 2 * r + 1}")
    return k.vmem(f"buffer_store_dwordx4 {vr(vXRES, 4)}, v{vKA}, {WSD()}, s{s4_} offen sc1")


HB, AC2, AR = 124, 76, 28
vB2, vSM, vSS, vC0, vSD = 2, 10, 11, 12, 14
BATCH = 3
NB = (43 + BATCH - 1) // BATCH
sGB = 27


def gelu_ops(acc, tmp, out):
    L = []
    for r in range(0, 16, 2):
        L.append(f"v_pk_mul_f32 {vr(tmp + r, 2)}, {vr(acc + r, 2)}, {vr(acc + r, 2)}")
    for r in range(0, 16, 2):
        L.append(f"v_pk_fma_f32 {vr(tmp + r, 2)}, {vr(tmp + r, 2)}, {vr(vC0, 2)}, {vr(vC0, 2)} op_sel:[0,1,0] op_sel_hi:[1,1,0]")
    for r in range(0, 16, 2):
        L.append(f"v_pk_mul_f32 {vr(tmp + r, 2)}, {vr(tmp + r, 2)}, {vr(acc + r, 2)}")
    for r in range(16):
        L.append(f"v_exp_f32 v{tmp + r}, v{tmp + r}")
    for r in range(0, 16, 2):
        L.append(f"v_pk_fma_f32 {vr(tmp + r, 2)}, {vr(tmp + r, 2)}, {vr(vSD, 2)}, {vr(vSD, 2)} op_sel_hi:[1,0,0]")
    for r in range(16):
        L.append(f"v_rcp_f32 v{tmp + r}, v{tmp + r}")
    for r in range(0, 16, 2):
        L.append(f"v_pk_mul_f32 {vr(tmp + r, 2)}, {vr(tmp + r, 2)}, {vr(acc + r, 2)}")
    for r in range(8):
        L.append(f"v_cvt_pk_bf16_f32 v{out + r}, v{tmp + 2 * r}, v{tmp + 2 * r + 1}")
    return L


def loader_setup():
    e(f"s_lshr_b32 s{s0}, s{sJ}, 3")
    e(f"s_lshl2_add_u32 s{s0}, s{sXCD}, s{s0}")
    e(f"s_lshr_b32 s{s1}, s{sT}, 1")
    e(f"s_lshl1_add_u32 s{s0}, s{s0}, s{s1}")
    e(f"s_mov_b32 s{sT1}, s{s0}")
    e(f"s_mul_i32 s{sGB}, s{s0}, 86")
    e(f"s_and_b32 s{s1}, s{sT}, 1")
    e(f"s_add_u32 s{sGB}, s{sGB}, s{s1}")
    e(f"s_lshl_b32 s{sGB}, s{sGB}, 10")
    e(f"s_add_u32 s{sGB}, s{sGB}, {WS_GD}")
    e(f"s_lshl_b32 s{s7_}, s{sT}, 10")


def g_poll(third):
    cnt = 15 if third == 0 else 14
    e(f"v_min_u32 v4, {cnt - 1}, v{vL}")
    e("v_mul_u32_u24 v4, 0x180, v4")
    e(f"s_lshl_b32 s{s0}, s{sT1}, 13")
    e(f"s_add_u32 s{s0}, s{s0}, {WS_FG + third * 128}")
    e(f"v_add_u32 v4, s{s0}, v4")
    poll(4, vPT, all_set, f"g{third}")


def g_issue(n):
    e(f"s_add_u32 m0, s{s7_}, {slot(n)}")
    e(f"s_add_u32 s{s0}, s{sGB}, {tau(n) * 2048}")
    return k.vmem(f"buffer_load_dwordx4 v{vKA}, {WSD()}, s{s0} offen sc1 lds")


def c2_f0(htok):
    e(f"s_lshl2_add_u32 s{s4_}, s{sRB}, s{sT}")
    e(f"s_lshl_b32 s{s0}, s{s4_}, 12")
    e(f"s_add_u32 s{s0}, s{s0}, {WS_FH}")
    e(f"v_and_b32 v4, 31, v{vL}")
    e(f"v_lshl_add_u32 v4, v4, 7, s{s0}")
    e(f"s_lshl_b32 s{s5_}, s{s4_}, 15")
    e(f"s_add_u32 s{s5_}, s{s5_}, {WS_H}")
    e(f"v_add_u32 v{vB2}, 0x10000, v{vKA}")
    e(f"v_mov_b32 v{vSM}, 0")
    e(f"v_mov_b32 v{vSS}, 0")
    k.wait(vm=htok)
    flag_store(vOFA, vTAG)
    stamp("h_flag")
    e(f"s_mul_i32 s{s1}, s{sHP}, 3")
    for i in range(3):
        e(f"s_add_u32 s{s0}, s{s1}, {i}")
        e(f"s_mul_i32 s{s2_}, s{s4_}, 43")
        e(f"s_add_u32 s{s2_}, s{s2_}, s{s0}")
        e(f"s_lshl_b32 s{s2_}, s{s2_}, 11")
        e(f"s_add_u32 s{s2_}, s{s2_}, {WS_GD}")
        e(f"s_lshl_b32 s{s3_}, s{s4_}, 6")
        e(f"s_add_u32 s{s3_}, s{s3_}, s{s0}")
        e(f"s_lshl_b32 s{s3_}, s{s3_}, 7")
        e(f"s_add_u32 s{s3_}, s{s3_}, {WS_FG}")
        e(f"s_cmp_lt_u32 s{s0}, 43")
        e(f"s_cselect_b32 s{s2_}, s{s2_}, {OOB}")
        e(f"s_cselect_b32 s{s3_}, s{s3_}, {OOB}")
        e(f"v_add_u32 v{16 + i}, s{s2_}, v{vKA}")
        e(f"v_mov_b32 v{19 + i}, s{s3_}")
    LAA = 4
    at = {}

    def rdA(ks):
        for i in range(2):
            r = AR + 8 * (ks % 6) + 4 * i
            if ks < 32:
                at[ks] = k.lds(f"ds_read_b128 {vr(r, 4)}, v{vKA} offset:{i * 32768 + ks * 1024}")
            else:
                at[ks] = k.lds(f"ds_read_b128 {vr(r, 4)}, v{vB2} offset:{32768 + i * 1024}")
    for ks in range(LAA):
        rdA(ks)
    poll(4, vPT, all_set, "h")
    stamp("h_seen")
    LAB = 10
    bt = {}

    def ldB(ks):
        if ks and ks % 4 == 0:
            e(f"s_add_u32 s{s5_}, s{s5_}, 4096")
        bt[ks] = k.vmem(f"buffer_load_dwordx4 {vr(HB + 4 * ks, 4)}, v{vKA}, {WSD()}, s{s5_} offen offset:{(ks & 3) * 1024} sc1")
    for ks in range(LAB):
        ldB(ks)
    for ks in range(32):
        k.wait(vm=bt[ks], lg=at[ks])
        b = HB + 4 * ks
        for i in range(2):
            c = "0" if ks == 0 else vr(AC2 + 16 * i, 16)
            e(f"v_mfma_f32_32x32x16_bf16 {vr(AC2 + 16 * i, 16)}, {vr(AR + 8 * (ks % 6) + 4 * i, 4)}, {vr(b, 4)}, {c}")
            if i == 0:
                if ks + LAB < 32:
                    ldB(ks + LAB)
                if ks + LAB == 31:
                    e("s_barrier")
                if ks + LAA <= 32:
                    rdA(ks + LAA)
            for r in range(2 * i, 2 * i + 2):
                e(f"v_dot2c_f32_bf16 v{vSM}, s{sONES}, v{b + r}")
                e(f"v_dot2c_f32_bf16 v{vSS}, v{b + r}, v{b + r}")
    stamp("c2_p1")
    e(f"v_mov_b32 v5, v{vSM}")
    e(f"v_mov_b32 v6, v{vSS}")
    e(f"v_permlane32_swap_b32 v5, v{vSM}")
    e(f"v_permlane32_swap_b32 v6, v{vSS}")
    e(f"v_add_f32 v{vSM}, v5, v{vSM}")
    e(f"v_add_f32 v{vSS}, v6, v{vSS}")
    ln_stats(vSM, vSS, 5, vSD, 6, 7)
    ab = HB + 128
    e(f"v_cvt_pk_bf16_f32 v{ab}, -v5, -v5")
    e(f"v_lshrrev_b32 v{ab + 1}, 16, v{vSD}")
    e(f"v_mov_b32 v{ab + 2}, 0")
    e(f"v_mov_b32 v{ab + 3}, 0")
    e(f"v_mul_f32 v{vC0}, 0xc0135761, v6")
    k.wait(lg=at[32])
    for i in range(2):
        e(f"v_mfma_f32_32x32x16_bf16 {vr(AC2 + 16 * i, 16)}, {vr(AR + 8 * (32 % 6) + 4 * i, 4)}, {vr(ab, 4)}, {vr(AC2 + 16 * i, 16)}")
    e("v_mul_f32 v7, v6, v6")
    e(f"v_mul_f32 v7, 0x3d372713, v7")
    e(f"v_mul_f32 v{vC0 + 1}, v{vC0}, v7")
    R2, TMP, OUT = AR + 24, AR, AR + 16
    t2 = {}

    def rd2(ks):
        off = ks * 1024 if ks < 32 else 32768 + 2048
        t2[ks] = k.lds(f"ds_read_b128 {vr(R2 + 4 * (ks % 6), 4)}, v{vB2} offset:{off}")
    LA2 = 4
    for ks in range(LA2):
        rd2(ks)

    def gstore(i):
        k.vmem(f"buffer_store_dwordx4 {vr(OUT, 4)}, v{16 + i}, {WSD()}, 0 offen sc1")
        return k.vmem(f"buffer_store_dwordx4 {vr(OUT + 4, 4)}, v{16 + i}, {WSD()}, 0 offen offset:1024 sc1")
    for x in gelu_ops(AC2, TMP, OUT):
        e(x)
    g0 = gstore(0)
    stamp("g0_st")
    ops = gelu_ops(AC2 + 16, TMP, OUT)
    done = 0
    g1 = None
    for ks in range(33):
        k.wait(lg=t2[ks])
        c = "0" if ks == 0 else vr(AC2 + 32, 16)
        e(f"v_mfma_f32_32x32x16_bf16 {vr(AC2 + 32, 16)}, {vr(R2 + 4 * (ks % 6), 4)}, {vr(HB + 4 * ks, 4)}, {c}")
        if ks + LA2 <= 32:
            rd2(ks + LA2)
        if ks == 18:
            k.wait(vm=g0)
            flag_store(19, vTAG)
        upto = min(len(ops), (ks + 1) * 3)
        for x in ops[done:upto]:
            e(x)
        if done < len(ops) and upto == len(ops):
            g1 = gstore(1)
        done = upto
    loader_setup()
    ops = gelu_ops(AC2 + 32, TMP, OUT)
    for n, x in enumerate(ops):
        if n == 64:
            k.wait(vm=g1)
            flag_store(20, vTAG)
        e(x)
    g2 = gstore(2)
    stamp("g2_st")
    bt = {}
    for b in range(NB):
        if b in bt:
            k.wait(vm=bt[b])
        e("s_barrier")
        if b == 0:
            k.wait(vm=g2)
            flag_store(21, vTAG)
        if b == 1:
            g_poll(1)
        nb = b + 3
        if nb * BATCH >= 15 and nb < NB:
            for n in range(nb * BATCH, min(43, nb * BATCH + BATCH)):
                if n == 29:
                    g_poll(2)
                bt[nb] = g_issue(n)
    e("s_barrier")
    e("s_branch L_finish")


def c2_f1(htok):
    e(f"s_mov_b32 s{ST}, s{pB1}")
    e(f"s_mov_b32 s{ST + 1}, s{pB1 + 1}")
    e(f"s_mov_b32 s{ST + 2}, 2752")
    e(f"s_mov_b32 s{ST + 3}, 0x20000")
    e(f"s_mul_i32 s{s0}, s{sHP}, 3")
    e(f"s_add_u32 s{s0}, s{s0}, s{sT}")
    e(f"s_lshl_b32 s{s0}, s{s0}, 6")
    e(f"v_and_b32 v5, 31, v{vL}")
    e(f"v_lshl_add_u32 v5, v5, 1, s{s0}")
    k.wait(vm=htok)
    flag_store(vOFA, vTAG)
    stamp("h_flag")
    b1t = k.vmem(f"buffer_load_ushort v13, v5, s[{ST}:{ST + 3}], 0 offen")
    e(f"s_min_u32 s{s0}, s{sT}, 2")
    e(f"s_lshl_b32 s{s0}, s{s0}, 15")
    e(f"v_add_u32 v5, s{s0}, v{vKA}")
    e("v_mov_b32 v10, 0")
    e("v_mov_b32 v11, 0")
    toks = {}

    def rd(ks):
        toks[ks] = k.lds(f"ds_read_b128 {vr(24 + 4 * (ks % 12), 4)}, v5 offset:{ks * 1024}")
    for ks in range(10):
        rd(ks)
    for ks in range(32):
        k.wait(lg=toks[ks])
        for r in range(4):
            e(f"v_dot2c_f32_bf16 v{10 + (r & 1)}, s{sONES}, v{24 + 4 * (ks % 12) + r}")
        if ks + 10 < 32:
            rd(ks + 10)
    e("v_add_f32 v10, v10, v11")
    e("v_mov_b32 v11, v10")
    e("v_permlane32_swap_b32 v10, v11")
    e("v_add_f32 v10, v10, v11")
    bf16_rne(11, 10)
    e("v_sub_f32 v10, v10, v11")
    e("v_cvt_pk_bf16_f32 v12, v11, v10")
    e("v_mov_b32 v14, 0")
    e("v_mov_b32 v15, 0")
    e(f"s_lshl_b32 s{s0}, s{sT}, 10")
    e(f"s_add_u32 s{s0}, s{s0}, {AUG}")
    e(f"v_add_u32 v5, s{s0}, v{vKA}")
    k.wait(vm=b1t)
    e("s_mov_b32 exec_lo, 0")
    e("v_mov_b32 v12, 0")
    e("v_mov_b32 v13, 0")
    e("s_mov_b32 exec_lo, -1")
    k.lds("ds_write_b128 v5, v[12:15]")
    loader_setup()
    e(f"s_mov_b32 s{ST}, s{pB2}")
    e(f"s_mov_b32 s{ST + 1}, s{pB2 + 1}")
    e(f"s_mov_b32 s{ST + 2}, 1024")
    e(f"s_and_b32 s{s0}, s{sJ}, 7")
    e(f"s_and_b32 s{s1}, s{sT}, 1")
    e(f"s_lshl1_add_u32 s{sFT1}, s{s0}, s{s1}")
    e(f"s_lshl_b32 s{s0}, s{sFT1}, 6")
    e(f"v_lshrrev_b32 v5, 5, v{vL}")
    e(f"v_lshl_add_u32 v5, v5, 3, s{s0}")
    k.wait(lg="all")
    e("s_barrier")
    for j in range(4):
        k.vmem(f"buffer_load_dwordx2 {vr(B3 + 2 * j, 2)}, v5, s[{ST}:{ST + 3}], 0 offen offset:{16 * j}")
    w2_issue(W2_P1, 43)
    e(f"s_lshr_b32 s{s0}, s{sT}, 1")
    e(f"s_mul_i32 s{s1}, s{s0}, 3072")
    e(f"v_add_u32 v10, s{s1}, v{vKA}")
    e("v_xor_b32 v13, 0x800, v10")
    for i in (1, 2):
        e(f"v_add_u32 v{10 + i}, {i * 65536}, v10")
        e(f"v_add_u32 v{13 + i}, {i * 65536}, v13")
    g_poll(0)
    stamp("g0_seen")
    e(f"s_lshl_b32 s{s0}, s{sT1}, 4")
    e(f"s_add_u32 s{s0}, s{s0}, s{sFT1}")
    e(f"s_lshl_b32 s{s0}, s{s0}, 11")
    e(f"s_add_u32 s{s0}, s{s0}, {WS_H}")
    k.vmem(f"buffer_load_dwordx4 {vr(B3 + 8, 4)}, v{vKA}, {WSD()}, s{s0} offen sc1")
    ht = k.vmem(f"buffer_load_dwordx4 {vr(B3 + 12, 4)}, v{vKA}, {WSD()}, s{s0} offen offset:1024 sc1")
    gt = {}
    for n in range(15):
        gt[n // BATCH] = g_issue(n)
    k.wait(vm=ht)
    for d in range(8):
        e(f"v_lshlrev_b32 v{AC3 + 2 * d}, 16, v{B3 + 8 + d}")
        e(f"v_and_b32 v{AC3 + 2 * d + 1}, 0xffff0000, v{B3 + 8 + d}")
        e(f"v_lshlrev_b32 v{B3 + 16}, 16, v{B3 + d}")
        e(f"v_and_b32 v{B3 + 17}, 0xffff0000, v{B3 + d}")
        e(f"v_pk_add_f32 {vr(AC3 + 2 * d, 2)}, {vr(AC3 + 2 * d, 2)}, {vr(B3 + 16, 2)}")
    e(f"v_and_b32 v5, 31, v{vL}")
    e("v_lshlrev_b32 v5, 10, v5")
    e(f"v_lshrrev_b32 v6, 5, v{vL}")
    e("v_lshl_add_u32 v5, v6, 4, v5")
    e(f"s_lshl_b32 s{s0}, s{sT1}, 15")
    e(f"s_lshl_b32 s{s1}, s{sFT1}, 6")
    e(f"s_add_u32 s{s4_}, s{s0}, s{s1}")
    XC = 114688
    e(f"s_lshl_b32 s{s0}, s{sT}, 12")
    e(f"s_add_u32 s{s1}, s{s0}, {XC}")
    e(f"v_add_u32 v6, s{s1}, v{vKA}")
    e("v_xor_b32 v7, 0x2000, v6")
    LA = 2
    rt = {}

    def rdB(n):
        if n % BATCH == 0:
            if n // BATCH in gt:
                k.wait(vm=gt[n // BATCH])
            e("s_barrier")
            if n == 0:
                stamp("g_first")
        a = slot(n)
        for i in range(2):
            rt[n] = k.lds(f"ds_read_b128 {vr(B3 + 8 * (n % 3) + 4 * i, 4)}, v{10 + 3 * i + (a >> 16)} offset:{a & 0xffff}")
    for n in range(LA):
        rdB(n)
    for n in range(43):
        if n + LA < 43:
            rdB(n + LA)
        k.wait(lg=rt[n])
        for i in (1, 0):
            c = "0" if (n == 0 and i == 1) else vr(AC3 + 16 * i, 16)
            e(f"v_mfma_f32_32x32x16_bf16 {vr(AC3 + 16 * i, 16)}, {vr(A3 + 4 * n, 4)}, {vr(B3 + 8 * (n % 3) + 4 * i, 4)}, {c}")
    stamp("c3_mfma")
    for j in range(4):
        k.lds(f"ds_write_b128 v7, {vr(AC3 + 16 + 4 * j, 4)} offset:{j * 1024}")
    k.wait(lg="all")
    e("s_barrier")
    tk = []
    for j in range(4):
        tk.append(k.lds(f"ds_read_b128 {vr(B3 + 4 * j, 4)}, v6 offset:{j * 1024}"))
    O = 84
    for j in range(4):
        k.wait(lg=tk[j])
        for r in (0, 2):
            e(f"v_pk_add_f32 {vr(AC3 + 4 * j + r, 2)}, {vr(AC3 + 4 * j + r, 2)}, {vr(B3 + 4 * j + r, 2)}")
        for r in (0, 1):
            e(f"v_cvt_pk_bf16_f32 v{O + 2 * j + r}, v{AC3 + 4 * j + 2 * r}, v{AC3 + 4 * j + 2 * r + 1}")
        if j & 1:
            o = O + 2 * (j - 1)
            e(f"v_permlane32_swap_b32 v{o}, v{o + 2}")
            e(f"v_permlane32_swap_b32 v{o + 1}, v{o + 3}")
            k.vmem(f"buffer_store_dwordx4 {vr(o, 4)}, v5, s[{SOUT}:{SOUT + 3}], s{s4_} offen offset:{16 * (j - 1)}")


def run(otok):
    htok = c1(otok)
    vm = k.vm
    e(f"s_cmp_lg_u32 s{sF}, 0")
    e("s_cbranch_scc1 L_c2_f1")
    c2_f0(htok)
    k.label("L_c2_f1")
    k.vm = vm
    c2_f1(htok)
```

```python
import sys
from asmlib import K, pad_hazards, vr, sr

NAME = "sequential_preLN__softmax_full_mha__dense_activation_gelu__prompt"
DEV = "--dev" in sys.argv
STOP = None
for a in sys.argv:
    if a.startswith("--stop="):
        STOP = a.split("=")[1]
FORCE_SLOW = "--force-slow" in sys.argv

WS_G = 0x0
WS_FKV = 0x10000
WS_FO = 0x50000
WS_FH = 0x90000
WS_FG = 0xD0000
WS_FP = 0x150000
WS_TS = 0x160000
WS_KV = 0x200000
WS_O = 0x600000
WS_H = 0x800000
WS_GD = 0xA00000
WS_WO = 0x1000000
WS_W1 = 0x1080000
WS_W2 = 0x1200000
WS_SIZE = 0x1400000
OOB = 0x40000000

XRING = 0
WRING = 65536
QF = 98304
MISC = 106496
EXCH = 108544
WQ = 131072
PACK = 0
W1L = 0
AUG = 98304
RED = 108544
OST = 108544
C1X = 141312
LDS_SIZE = 163840

sONES = 3
SX, SW, SWS, SOUT, ST = 4, 8, 12, 16, 20
pWO, pW1, pB1, pW2, pB2 = 28, 32, 34, 36, 38
sTAG = 46
sWv, sT, sF, sXCD, sJ, sRB, sHP, sC = 48, 49, 50, 51, 52, 53, 54, 55
sXB, sWB = 56, 57
s0, s1, s2_, s3_, s4_, s5_, s6_, s7_ = 58, 59, 60, 61, 62, 63, 64, 65
sMASK, sABORT, sKVB, sVMASK = 66, 67, 68, 40
sRET = 42
sROT = 69
sSTMP = 24
sSTAMP0 = 70

k = K()
e = k.e
stamp_names = []


def stamp(name):
    if not DEV:
        return
    if name not in stamp_names:
        stamp_names.append(name)
    i = stamp_names.index(name)
    assert i < 30
    e(f"s_memrealtime s[{sSTMP}:{sSTMP + 1}]")
    e("s_waitcnt lgkmcnt(0)")
    e(f"s_mov_b32 s{sSTAMP0 + i}, s{sSTMP}")


def bf16_rne(dst, src):
    e(f"v_cvt_pk_bf16_f32 v{dst}, v{src}, v{src}")
    e(f"v_and_b32 v{dst}, 0xffff0000, v{dst}")


def ln_stats(vsum, vsq, vmean, vsd, vrstd, tmp):
    e(f"v_mul_f32 v{tmp}, 0x3b000000, v{vsum}")
    e(f"v_mul_f32 v{vsq}, 0x3b000000, v{vsq}")
    e(f"v_fma_f32 v{vsq}, -v{tmp}, v{tmp}, v{vsq}")
    e(f"v_max_f32 v{vsq}, 0, v{vsq}")
    bf16_rne(vmean, tmp)
    bf16_rne(vsq, vsq)
    e(f"v_add_f32 v{vsq}, 0x3727c5ac, v{vsq}")
    bf16_rne(vsq, vsq)
    e(f"v_sqrt_f32 v{vsq}, v{vsq}")
    bf16_rne(vsd, vsq)
    e(f"v_rcp_f32 v{vrstd}, v{vsd}")


def poll(vaddr, vtmp, cond, name):
    lp = k.newlabel("Lpoll_" + name)
    dn = k.newlabel("Lpolld_" + name)
    k.label(lp)
    e(f"buffer_load_dwordx2 v[{vtmp}:{vtmp + 1}], v{vaddr}, s[{SWS}:{SWS + 3}], 0 offen sc1")
    e(f"s_add_u32 s{sABORT}, s{sABORT}, 1")
    e(f"s_cmp_gt_u32 s{sABORT}, 0x20000")
    e(f"s_cbranch_scc1 {dn}")
    e("s_waitcnt vmcnt(0)")
    e(f"v_cmp_eq_u64 vcc, s[{sTAG}:{sTAG + 1}], v[{vtmp}:{vtmp + 1}]")
    cond()
    e(f"s_cbranch_scc0 {lp}")
    k.label(dn)
    e("s_waitcnt vmcnt(0)")


def flag_store(vaddr, vtag):
    e("s_mov_b64 exec, 1")
    tok = k.vmem(f"buffer_store_dwordx2 v[{vtag}:{vtag + 1}], v{vaddr}, s[{SWS}:{SWS + 3}], 0 offen sc1")
    e("s_mov_b64 exec, -1")
    return tok


vL = 1
vXD, vWD, vQD = 2, 3, 4
vXR, vWR, vQR = 5, 9, 13
vCS, vSUM, vSQ = 17, 18, 19
vMEAN, vRSTD = 20, 21
vTAG = 22
WF, ACC, QACC, XF = 64, 96, 112, 128


def entry():
    e("s_cmp_ge_u32 s2, 0x100")
    e("s_cbranch_scc1 L_end")
    e(f"s_load_dwordx2 s[{SX}:{SX + 1}], s[0:1], 0")
    e(f"s_load_dwordx2 s[{SW}:{SW + 1}], s[0:1], 8")
    e(f"s_load_dwordx2 s[{SWS}:{SWS + 1}], s[0:1], 80")
    if DEV:
        e(f"s_memrealtime s[{sSTMP + 2}:{sSTMP + 3}]")
    e("v_lshrrev_b32 v5, 6, v0")
    e("v_lshrrev_b32 v6, 3, v0")
    e(f"v_readfirstlane_b32 s{sWv}, v5")
    e("v_lshrrev_b32 v7, 4, v0")
    e("v_xor_b32 v8, v0, v7")
    e("v_and_b32 v8, 7, v8")
    e("v_lshlrev_b32 v8, 4, v8")
    e(f"v_lshl_add_u32 v{vXD}, v6, 10, v8")
    e("v_lshrrev_b32 v7, 2, v0")
    e("v_and_b32 v7, 4, v7")
    e("v_xor_b32 v7, v0, v7")
    e("v_and_b32 v7, 7, v7")
    e("v_lshlrev_b32 v7, 4, v7")
    e("v_mul_u32_u24 v6, 0xc00, v6")
    e(f"v_add_u32 v{vWD}, v6, v7")
    e(f"s_and_b32 s{sXCD}, s2, 7")
    e(f"s_lshr_b32 s{sJ}, s2, 3")
    e(f"s_and_b32 s{s0}, s{sJ}, 1")
    e(f"s_lshl1_add_u32 s{sRB}, s{sXCD}, s{s0}")
    e(f"s_lshr_b32 s{sHP}, s{sJ}, 1")
    e(f"s_lshl2_add_u32 s{sC}, s{s0}, s{sHP}")
    e(f"s_add_u32 s{sC}, s{sC}, s{sXCD}")
    e(f"s_and_b32 s{sC}, s{sC}, 7")
    e(f"s_mov_b32 s{sROT}, s{sC}")
    e(f"s_lshl_b32 s{sXB}, s{sRB}, 17")
    e(f"s_and_b32 s{s0}, s{sHP}, 1")
    e(f"s_lshr_b32 s{s1}, s{sHP}, 1")
    e(f"s_lshl3_add_u32 s{s0}, s{s0}, s{s1}")
    e(f"s_lshl_b32 s{s0}, s{s0}, 7")
    e(f"s_add_u32 s{sWB}, s{s0}, 0x400")
    e(f"s_mov_b32 s{SX + 2}, 0x200000")
    e(f"s_mov_b32 s{SX + 3}, 0x20000")
    e(f"s_mov_b32 s{SW + 2}, 0x180000")
    e(f"s_mov_b32 s{SW + 3}, 0x20000")
    e(f"s_lshl_b32 s{s7_}, s{sWv}, 10")
    e("s_waitcnt lgkmcnt(0)")


def a_issue(i):
    slot = i & 3
    e(f"s_lshl_b32 s{s0}, s{sC}, 7")
    e(f"s_add_u32 s{s0}, s{s0}, s{sXB}")
    e(f"s_add_u32 m0, s{s7_}, {XRING + slot * 16384}")
    e(f"s_mul_i32 s{s1}, s{sC}, 0x30000")
    k.vmem(f"buffer_load_dwordx4 v{vXD}, s[{SX}:{SX + 3}], s{s0} offen lds")
    e(f"s_add_u32 m0, s{s7_}, {WRING + slot * 8192}")
    e(f"s_add_u32 s{s1}, s{s1}, s{sWB}")
    k.vmem(f"buffer_load_dwordx4 v{vWD}, s[{SW}:{SW + 3}], s{s1} offen lds")
    e(f"s_add_u32 m0, s{s7_}, {XRING + slot * 16384 + 8192}")
    e(f"s_add_u32 s{s0}, s{s0}, 0x10000")
    tok = k.vmem(f"buffer_load_dwordx4 v{vXD}, s[{SX}:{SX + 3}], s{s0} offen lds")
    e(f"s_add_u32 s{sC}, s{sC}, 1")
    e(f"s_and_b32 s{sC}, s{sC}, 7")
    return tok


def setup_rest():
    e(f"s_load_dwordx2 s[{sTAG}:{sTAG + 1}], s[{SWS}:{SWS + 1}], {WS_G}")
    e(f"s_load_dwordx4 s[28:31], s[0:1], 16")
    e(f"s_load_dwordx8 s[32:39], s[0:1], 32")
    e(f"s_load_dwordx2 s[{SOUT}:{SOUT + 1}], s[0:1], 64")
    e(f"s_mov_b32 s{SWS + 2}, {WS_SIZE}")
    e(f"s_mov_b32 s{SWS + 3}, 0x20000")
    e(f"s_mov_b32 s{SOUT + 2}, 0x200000")
    e(f"s_mov_b32 s{SOUT + 3}, 0x20000")
    e(f"s_mov_b32 s{sONES}, 0x3f803f80")
    e(f"s_mov_b32 s{sABORT}, 0")
    e(f"s_and_b32 s{sT}, s{sWv}, 3")
    e(f"s_lshr_b32 s{sF}, s{sWv}, 2")
    e(f"v_and_b32 v{vL}, 63, v0")
    e(f"s_getpc_b64 s[{ST}:{ST + 1}]")
    k.label("L_pc")
    e(f"s_mov_b32 s{ST + 2}, L_code_end-L_pc")
    e(f"s_mov_b32 s{ST + 3}, 0x20000")
    e(f"s_lshl3_add_u32 s{s0}, s{sJ}, s{sWv}")
    e(f"s_lshl_b32 s{s0}, s{s0}, 8")
    e(f"v_lshlrev_b32 v24, 2, v{vL}")
    k.vmem(f"buffer_load_dword v25, v24, s[{ST}:{ST + 3}], s{s0} offen")
    e(f"s_lshl_b32 s{s0}, s{sF}, 1")
    e(f"s_xor_b32 s{s0}, s{s0}, s{sT}")
    e(f"v_and_b32 v26, 31, v{vL}")
    e(f"v_lshrrev_b32 v27, 5, v{vL}")
    e("v_bfe_u32 v28, v26, 1, 3")
    e("v_xor_b32 v28, v28, v27")
    e(f"s_lshl_b32 s{s1}, s{s0}, 1")
    e(f"v_xor_b32 v28, s{s1}, v28")
    e("v_lshlrev_b32 v28, 4, v28")
    e(f"s_lshl_b32 s{s1}, s{sT}, 12")
    e(f"v_lshl_add_u32 v29, v26, 7, s{s1}")
    e(f"v_add_u32 v{vXR}, v28, v29")
    for ks in range(1, 4):
        e(f"v_xor_b32 v{vXR + ks}, {ks * 32}, v{vXR}")
    e(f"v_bfe_u32 v28, v{vL}, 2, 2")
    e("v_lshl_add_u32 v28, v27, 3, v28")
    e(f"v_and_b32 v29, 3, v{vL}")
    e("v_lshlrev_b32 v29, 3, v29")
    e(f"v_bfe_u32 v30, v{vL}, 4, 1")
    e("v_lshl_add_u32 v29, v30, 5, v29")
    e(f"v_bfe_u32 v30, v{vL}, 3, 1")
    e(f"v_xor_b32 v30, s{sF}, v30")
    e("v_lshl_add_u32 v30, v30, 6, v29")
    e("v_lshl_add_u32 v30, v28, 7, v30")
    e(f"s_lshl_b32 s{s1}, s{s0}, 11")
    e(f"s_add_u32 s{s1}, s{s1}, {WRING}")
    e(f"v_add_u32 v{vWR}, s{s1}, v30")
    for ks in range(1, 4):
        e(f"v_xor_b32 v{vWR + ks}, {ks * 2048}, v{vWR}")
    e("v_lshl_add_u32 v30, v28, 6, v29")
    e(f"s_lshl_b32 s{s1}, s{s0}, 10")
    e(f"s_add_u32 s{s1}, s{s1}, {WQ}")
    e(f"v_add_u32 v{vQR}, s{s1}, v30")
    for ks in range(1, 4):
        e(f"v_xor_b32 v{vQR + ks}, {ks * 1024}, v{vQR}")
    e(f"v_lshrrev_b32 v28, 2, v{vL}")
    e("v_mul_u32_u24 v28, 0xc00, v28")
    e(f"v_and_b32 v29, 3, v{vL}")
    e(f"v_lshl_add_u32 v{vQD}, v29, 4, v28")
    e(f"v_mov_b32 v{vCS}, 0")
    e(f"v_mov_b32 v{vSUM}, 0")
    e(f"v_mov_b32 v{vSQ}, 0")
    e(f"v_mov_b32 v28, {MISC}")
    e(f"ds_write_b32 v28, v{vCS}")
    e("s_waitcnt lgkmcnt(0)")
    e(f"s_mul_i32 s{sTAG}, s{sTAG}, 0x9e3779b1")
    e(f"s_add_u32 s{sTAG}, s{sTAG}, 0x7f4a7c15")
    e(f"s_add_u32 s{sTAG + 1}, s{sTAG + 1}, 0x632be5ab")
    e(f"v_mov_b32 v{vTAG}, s{sTAG}")
    e(f"v_mov_b32 v{vTAG + 1}, s{sTAG + 1}")
    if DEV:
        stamp_names.append("start")
        e(f"s_mov_b32 s{sSTAMP0}, s{sSTMP + 2}")


def wq_issue():
    e(f"s_add_u32 s{s0}, s{sROT}, s{sWv}")
    e(f"s_and_b32 s{s0}, s{s0}, 7")
    e(f"s_mul_i32 s{s0}, s{s0}, 0x30000")
    e(f"s_lshl_b32 s{s1}, s{sHP}, 6")
    e(f"s_add_u32 s{s0}, s{s0}, s{s1}")
    e(f"s_lshl_b32 s{s1}, s{sWv}, 12")
    tok = None
    for q in range(4):
        e(f"s_add_u32 m0, s{s1}, {WQ + q * 1024}")
        if q:
            e(f"s_add_u32 s{s0}, s{s0}, 0xc000")
        tok = k.vmem(f"buffer_load_dwordx4 v{vQD}, s[{SW}:{SW + 3}], s{s0} offen lds")
    return tok


def phase_a(typ, toks, merge_vm):
    toks = list(toks)
    k.vm = merge_vm

    def reads(i):
        slot = i & 3
        for ks in range(4):
            k.lds(f"ds_read_b128 {vr(XF + 16 * i + 4 * ks, 4)}, v{vXR + ks} offset:{slot * 16384}")
            w = WF + 16 * (i & 1) + 4 * ks
            k.lds(f"ds_read_b64_tr_b16 {vr(w, 2)}, v{vWR + ks} offset:{slot * 8192}")
            k.lds(f"ds_read_b64_tr_b16 {vr(w + 2, 2)}, v{vWR + ks} offset:{slot * 8192 + 512}")

    def dots(i):
        d = []
        for r in range(8):
            x = XF + 16 * i + r
            d.append(f"v_dot2c_f32_bf16 v{vSUM}, s{sONES}, v{x}")
            d.append(f"v_dot2c_f32_bf16 v{vSQ}, v{x}, v{x}")
            if r & 1:
                d.append(f"v_dot2c_f32_bf16 v{vCS}, s{sONES}, v{WF + 16 * (i & 1) + (r >> 1)}")
        return d

    def mf(i, ks):
        x = vr(XF + 16 * i + 4 * ks, 4)
        w = vr(WF + 16 * (i & 1) + 4 * ks, 4)
        c = "0" if (i == 0 and ks == 0) else vr(ACC, 16)
        a, b = (w, x) if typ == 0 else (x, w)
        return f"v_mfma_f32_32x32x16_bf16 {vr(ACC, 16)}, {a}, {b}, {c}"

    wq_tok = None
    for i in range(8):
        k.wait(vm=toks[i], lg="all")
        e("s_barrier")
        if i + 3 < 8:
            toks.append(a_issue(i + 3))
        elif i == 5:
            wq_tok = wq_issue()
        reads(i)
        if i > 0:
            d = dots(i - 1)
            for ks in range(4):
                e(mf(i - 1, ks))
                for x in d[5 * ks:5 * ks + 5]:
                    e(x)
    e(f"v_and_b32 v26, 31, v{vL}")
    e(f"v_lshrrev_b32 v27, 5, v{vL}")
    e(f"s_lshl_b32 s{s0}, s{sT}, 10")
    e(f"s_add_u32 s{s0}, s{s0}, {EXCH}")
    e(f"v_lshl_add_u32 v28, v26, 5, s{s0}")
    e(f"s_lshl_b32 s{s0}, s{sF}, 4")
    e(f"v_lshl_add_u32 v29, v27, 3, s{s0}")
    e("v_add_u32 v29, v29, v28")
    e(f"s_lshl_b32 s{s0}, s{sF}, 10")
    e(f"s_add_u32 s{s0}, s{s0}, {EXCH + 4096}")
    e(f"v_lshl_add_u32 v30, v26, 5, s{s0}")
    e(f"s_lshl_b32 s{s0}, s{sT}, 3")
    e(f"v_lshl_add_u32 v31, v27, 2, s{s0}")
    e("v_add_u32 v31, v31, v30")
    e(f"s_lshl_b32 s{s0}, s{sWv}, 8")
    e(f"s_add_u32 s{s0}, s{s0}, {EXCH + 6144}")
    e(f"v_lshl_add_u32 v60, v26, 2, s{s0}")
    e(f"v_lshl_add_u32 v61, v27, 4, s{s0}")
    k.wait(lg="all")
    e(mf(7, 0))
    for x in dots(7):
        e(x)
    e(mf(7, 1))
    e(mf(7, 2))
    k.lds(f"ds_write_b64 v29, v[{vSUM}:{vSQ}]")
    k.lds(f"ds_write_b32 v31, v{vCS}")
    e(mf(7, 3))
    k.wait(lg="all")
    e("s_barrier")
    stamp("a_loop")
    k.lds("ds_read_b128 v[32:35], v28")
    t1 = k.lds("ds_read_b128 v[36:39], v28 offset:16")
    k.lds("ds_read_b128 v[40:43], v30")
    t2 = k.lds("ds_read_b128 v[44:47], v30 offset:16")
    e(f"s_lshr_b32 s{s0}, s{sHP}, 1")
    e(f"s_lshl1_add_u32 s{s0}, s{s0}, s{sF}")
    e(f"s_lshl2_add_u32 s{s1}, s{sRB}, s{sT}")
    e(f"s_lshl_b32 s{s2_}, s{s0}, 18")
    e(f"s_lshl_b32 s{s1}, s{s1}, 11")
    e(f"s_add_u32 s{s2_}, s{s2_}, s{s1}")
    e(f"s_add_u32 s{s2_}, s{s2_}, {WS_KV}")
    e(f"s_add_u32 s{s3_}, s{s2_}, 0x20000")
    e(f"s_lshl2_add_u32 s{s0}, s{s0}, s{sT}")
    e(f"s_lshl_b32 s{s0}, s{s0}, 5")
    e(f"s_add_u32 s{s0}, s{s0}, s{sRB}")
    e(f"s_lshl_b32 s{s0}, s{s0}, 7")
    e(f"s_add_u32 s{s0}, s{s0}, {WS_FKV + typ * 16 * 128}")
    e(f"v_mov_b32 v63, s{s0}")
    if typ == 0:
        e(f"v_lshrrev_b32 v48, 1, v{vL}")
        e(f"v_xor_b32 v48, v48, v{vL}")
        e("v_and_b32 v48, 4, v48")
        e("v_mul_u32_u24 v48, 3, v48")
        e(f"v_xor_b32 v48, v48, v{vL}")
        e("v_lshlrev_b32 v62, 4, v48")
    else:
        e(f"v_and_b32 v48, 15, v{vL}")
        e("v_lshl_add_u32 v48, v27, 4, v48")
        e("v_lshlrev_b32 v48, 4, v48")
        e(f"v_bfe_u32 v49, v{vL}, 4, 1")
        e("v_lshl_add_u32 v62, v49, 17, v48")
    k.wait(lg=t1)
    e("v_add_f32 v32, v32, v34")
    e("v_add_f32 v33, v33, v35")
    e("v_add_f32 v36, v36, v38")
    e("v_add_f32 v37, v37, v39")
    e("v_add_f32 v32, v32, v36")
    e("v_add_f32 v33, v33, v37")
    if typ == 0:
        k.wait(lg=t2)
        for a, b in ((40, 41), (42, 43), (44, 45), (46, 47), (40, 42), (44, 46), (40, 44)):
            e(f"v_add_f32 v{a}, v{a}, v{b}")
        k.lds("ds_write_b32 v60, v40")
        for j in range(4):
            k.lds(f"ds_read_b128 {vr(44 + 4 * j, 4)}, v61 offset:{32 * j}")
        ln_stats(32, 33, vMEAN, 34, vRSTD, 35)
        k.wait(lg="all")
        for r in range(16):
            e(f"v_fma_f32 v{44 + r}, -v{vMEAN}, v{44 + r}, v{ACC + r}")
        for r in range(16):
            e(f"v_mul_f32 v{44 + r}, v{vRSTD}, v{44 + r}")
        src = 44
    else:
        ln_stats(32, 33, vMEAN, 34, vRSTD, 35)
        k.lds(f"ds_write2_b32 v60, v{vMEAN}, v{vRSTD} offset0:0 offset1:32")
        for j in range(4):
            k.lds(f"ds_read_b128 {vr(WF + 4 * j, 4)}, v61 offset:{32 * j}")
        for j in range(4):
            k.lds(f"ds_read_b128 {vr(WF + 16 + 4 * j, 4)}, v61 offset:{128 + 32 * j}")
        k.wait(lg=t2)
        for a, b in ((40, 41), (42, 43), (44, 45), (46, 47), (40, 42), (44, 46), (40, 44)):
            e(f"v_add_f32 v{a}, v{a}, v{b}")
        k.wait(lg=k.lg - 4)
        for r in range(16):
            e(f"v_fma_f32 v{44 + r}, -v40, v{WF + r}, v{ACC + r}")
        k.wait(lg="all")
        for r in range(16):
            e(f"v_mul_f32 v{44 + r}, v{WF + 16 + r}, v{44 + r}")
        src = 44
    for r in range(8):
        e(f"v_cvt_pk_bf16_f32 v{ACC + r}, v{src + 2 * r}, v{src + 2 * r + 1}")
        if r == 3:
            off = "" if typ == 0 else " offset:1024"
            k.vmem(f"buffer_store_dwordx4 {vr(ACC, 4)}, v62, s[{SWS}:{SWS + 3}], s{s2_} offen{off} sc1")
    if typ == 0:
        k.vmem(f"buffer_store_dwordx4 {vr(ACC + 4, 4)}, v62, s[{SWS}:{SWS + 3}], s{s3_} offen sc1")
    else:
        k.vmem(f"buffer_store_dwordx4 {vr(ACC + 4, 4)}, v62, s[{SWS}:{SWS + 3}], s{s2_} offen offset:1536 sc1")
    k.wait(vm=wq_tok)


KVB, QR, SB, OA, WOR = 24, 96, 64, 128, 192
vIDX, vKA, vVA, vFA, vPF = 2, 3, 4, 5, 6
vPT = 8
vXRES = 16
NBUF = 3


def attn_setup():
    e(f"v_mov_b32 v{vIDX}, 0xdddd")
    e(f"v_lshlrev_b32 v{vKA}, 4, v{vL}")
    e(f"v_and_b32 v10, 15, v{vL}")
    e(f"v_lshrrev_b32 v11, 5, v{vL}")
    e("v_lshl_add_u32 v11, v11, 4, v10")
    e(f"v_lshlrev_b32 v{vVA}, 4, v11")
    e(f"v_add_u32 v10, s{sRB}, v10")
    e("v_and_b32 v10, 15, v10")
    e(f"v_and_b32 v11, 16, v{vL}")
    e("v_add_u32 v10, v10, v11")
    e(f"s_lshl2_add_u32 s{s0}, s{sHP}, s{sT}")
    e(f"s_lshl_b32 s{s0}, s{s0}, 12")
    e(f"s_add_u32 s{s0}, s{s0}, {WS_FKV}")
    e(f"v_lshl_add_u32 v{vFA}, v10, 7, s{s0}")
    e(f"s_lshl1_add_u32 s{s0}, s{sHP}, s{sF}")
    e(f"s_lshl_b32 s{s0}, s{s0}, 17")
    e(f"s_lshl_b32 s{s1}, s{sT}, 11")
    e(f"s_add_u32 s{s0}, s{s0}, s{s1}")
    e(f"s_add_u32 s{sKVB}, s{s0}, {WS_KV}")
    e(f"s_mov_b32 s{sVMASK}, 0xffff")
    e(f"s_mov_b32 s{sVMASK + 1}, 0xffff")
    e(f"s_mov_b32 s{sMASK}, 0")
    e(f"v_and_b32 v10, 27, v{vL}")
    e("v_cmp_eq_u32 vcc, 16, v10")
    e(f"v_mov_b32 v11, s{sONES}")
    e("v_cndmask_b32 v10, 0, v11, vcc")
    for b in range(NBUF):
        for r in range(4, 12):
            e(f"v_mov_b32 v{KVB + 12 * b + r}, v10")


def kv_issue(s, check=True):
    b = KVB + 12 * (s % NBUF)
    if check:
        stub = k.newlabel("Lkvs")
        ret = k.newlabel("Lkvr")
        e(f"s_bitcmp1_b32 s{sMASK}, {s}")
        e(f"s_cbranch_scc0 {stub}")
        k.label(ret)
        k.tail += [f"{stub}:", f"s_mov_b32 s{s6_}, {s}", f"s_call_b64 s[{sRET}:{sRET + 1}], L_kvpoll", f"s_branch {ret}"]
    e(f"s_add_u32 s{s0}, s{sRB}, {s}")
    e(f"s_and_b32 s{s0}, s{s0}, 15")
    e(f"s_lshl_b32 s{s0}, s{s0}, 13")
    e(f"s_add_u32 s{s0}, s{s0}, s{sKVB}")
    k.vmem(f"buffer_load_dwordx4 {vr(b, 4)}, v{vKA}, s[{SWS}:{SWS + 3}], s{s0} offen sc1")
    e(f"s_mov_b64 exec, s[{sVMASK}:{sVMASK + 1}]")
    k.vmem(f"buffer_load_dwordx4 {vr(b + 4, 4)}, v{vVA}, s[{SWS}:{SWS + 3}], s{s0} offen offset:1024 sc1")
    tok = k.vmem(f"buffer_load_dwordx4 {vr(b + 8, 4)}, v{vVA}, s[{SWS}:{SWS + 3}], s{s0} offen offset:1536 sc1")
    e("s_mov_b64 exec, -1")
    return tok


def kvpoll_routine():
    k.label("L_kvpoll")

    def cond():
        e(f"s_lshr_b32 s{sMASK}, vcc_lo, 16")
        e(f"s_and_b32 s{sMASK}, s{sMASK}, vcc_lo")
        e(f"s_bitcmp1_b32 s{sMASK}, s{s6_}")
    poll(vFA, vPT, cond, "kv")
    e(f"s_setpc_b64 s[{sRET}:{sRET + 1}]")


def q_pass():
    LA = 6
    toks = {}

    def rd(n):
        i, ks = n >> 2, n & 3
        w = WF + 4 * (n & 7)
        k.lds(f"ds_read_b64_tr_b16 {vr(w, 2)}, v{vQR + ks} offset:{i * 4096}")
        toks[n] = k.lds(f"ds_read_b64_tr_b16 {vr(w + 2, 2)}, v{vQR + ks} offset:{i * 4096 + 256}")
    kv_tok = k.vm
    e(f"v_mov_b32 v{vCS}, 0")
    for n in range(LA):
        rd(n)
    for n in range(32):
        k.wait(lg=toks[n])
        w = WF + 4 * (n & 7)
        c = "0" if n == 0 else vr(QACC, 16)
        e(f"v_mfma_f32_32x32x16_bf16 {vr(QACC, 16)}, {vr(w, 4)}, {vr(XF + 4 * n, 4)}, {c}")
        if n + LA < 32:
            rd(n + LA)
        for r in range(4):
            e(f"v_dot2c_f32_bf16 v{vCS}, s{sONES}, v{w + r}")
        if n == 20:
            k.wait(vm=kv_tok)
            flag_store(63, vTAG)
    e(f"v_mov_b32 v40, v{vCS}")
    e(f"v_permlane32_swap_b32 v40, v{vCS}")
    e(f"v_add_f32 v40, v40, v{vCS}")
    k.lds("ds_write_b32 v60, v40")
    for j in range(4):
        k.lds(f"ds_read_b128 {vr(WF + 4 * j, 4)}, v61 offset:{32 * j}")
    e(f"v_mul_f32 v{vRSTD}, 0x3eb8aa3b, v{vRSTD}")
    e(f"s_lshl_b32 s{s0}, s{sT}, 10")
    e(f"s_add_u32 s{s0}, s{s0}, {QF}")
    e(f"v_lshl_add_u32 v60, v{vL}, 4, s{s0}")
    k.wait(lg="all")
    for r in range(16):
        e(f"v_fma_f32 v{WF + r}, -v{vMEAN}, v{WF + r}, v{QACC + r}")
    for r in range(16):
        e(f"v_mul_f32 v{WF + r}, v{vRSTD}, v{WF + r}")
    for r in range(8):
        e(f"v_cvt_pk_bf16_f32 v{QACC + r}, v{WF + 2 * r}, v{WF + 2 * r + 1}")
        if r == 3:
            k.lds(f"ds_write_b128 v60, {vr(QACC, 4)}")
    k.lds(f"ds_write_b128 v60, {vr(QACC + 4, 4)} offset:4096")
    e(f"v_mov_b32 v{vPF}, {OOB}")


def pack_issue():
    def sel(dst, a, b, c):
        e(f"s_cmp_eq_u32 s{sWv}, 5")
        e(f"s_cselect_b32 s{dst}, {b}, {a}")
        if c != a:
            e(f"s_cmp_eq_u32 s{sWv}, 6")
            e(f"s_cselect_b32 s{dst}, {c}, s{dst}")
    sel(ST, f"s{pWO}", f"s{pW1}", f"s{pW2}")
    sel(ST + 1, f"s{pWO + 1}", f"s{pW1 + 1}", f"s{pW2 + 1}")
    e(f"s_mov_b32 s{s0}, 0x158000")
    e(f"s_cmp_eq_u32 s{sWv}, 4")
    e(f"s_cselect_b32 s{ST + 2}, 0x80000, s{s0}")
    e(f"s_mov_b32 s{ST + 3}, 0x20000")
    e(f"s_movk_i32 s{s0}, 0x400")
    e(f"s_cmp_eq_u32 s{sWv}, 5")
    e(f"s_cselect_b32 s{s1}, 0xac0, s{s0}")
    e(f"s_movk_i32 s{s0}, 0x100")
    sel(s2_, f"s{s0}", "704", "688")
    e(f"s_mov_b32 s{s0}, {WS_WO}")
    sel(s3_, f"s{s0}", WS_W1, WS_W2)
    e(f"v_lshrrev_b32 v24, 3, v{vL}")
    e(f"v_mul_u32_u24 v24, s{s1}, v24")
    e(f"v_lshrrev_b32 v25, 2, v{vL}")
    e("v_and_b32 v25, 4, v25")
    e(f"v_xor_b32 v25, v25, v{vL}")
    e("v_and_b32 v25, 7, v25")
    e("v_lshl_add_u32 v24, v25, 4, v24")
    e(f"s_mul_i32 s{s7_}, s{sT}, 6144")
    for n in range(3):
        e(f"s_add_u32 s{s0}, s2, {256 * n}")
        e(f"s_and_b32 s{s4_}, s{s0}, 31")
        e(f"s_lshr_b32 s{s5_}, s{s0}, 5")
        e(f"s_lshr_b32 s{s6_}, s{s0}, 3")
        e(f"s_and_b32 s{sMASK}, s{s0}, 7")
        e(f"s_cmp_eq_u32 s{sWv}, 6")
        e(f"s_cselect_b32 s{s4_}, s{s6_}, s{s4_}")
        e(f"s_cselect_b32 s{s5_}, s{sMASK}, s{s5_}")
        e(f"s_cselect_b32 s{s6_}, 86, 32")
        e(f"s_mul_i32 s{sMASK}, s{s5_}, s{s6_}")
        e(f"s_lshl1_add_u32 s{sMASK}, s{sMASK}, s{s4_}")
        e(f"s_lshl_b32 s{sMASK}, s{sMASK}, 10")
        e(f"s_add_u32 s{sMASK}, s{sMASK}, s{s3_}")
        e(f"s_cmp_lt_u32 s{s0}, s{s2_}")
        e(f"s_cselect_b32 s{sMASK}, s{sMASK}, {OOB}")
        e(f"s_cselect_b32 s{s0}, 0, {OOB}")
        e(f"v_lshl_add_u32 v{112 + 2 * n}, v{vL}, 4, s{sMASK}")
        e(f"s_lshl_b32 s{s6_}, s{s6_}, 10")
        e(f"v_add_u32 v{113 + 2 * n}, s{s6_}, v{112 + 2 * n}")
        e(f"s_mul_i32 s{s4_}, s{s4_}, s{s1}")
        e(f"s_lshl_b32 s{s4_}, s{s4_}, 4")
        e(f"s_lshl_b32 s{s5_}, s{s5_}, 7")
        e(f"s_add_u32 s{s4_}, s{s4_}, s{s5_}")
        e(f"s_add_u32 s{s4_}, s{s4_}, s{s0}")
        e(f"v_add_u32 v25, s{s4_}, v24")
        e(f"s_lshl_b32 s{s5_}, s{s1}, 3")
        e(f"s_add_u32 m0, s{s7_}, {PACK + n * 2048}")
        k.vmem(f"buffer_load_dwordx4 v25, s[{ST}:{ST + 3}], 0 offen lds")
        e(f"v_add_u32 v25, s{s5_}, v25")
        e(f"s_add_u32 m0, s{s7_}, {PACK + n * 2048 + 1024}")
        k.vmem(f"buffer_load_dwordx4 v25, s[{ST}:{ST + 3}], 0 offen lds")
    e(f"v_bfe_u32 v24, v{vL}, 2, 2")
    e(f"v_lshrrev_b32 v25, 5, v{vL}")
    e("v_lshl_add_u32 v24, v25, 2, v24")
    e(f"v_and_b32 v25, 3, v{vL}")
    e("v_lshlrev_b32 v25, 3, v25")
    e(f"v_bfe_u32 v26, v{vL}, 4, 1")
    e("v_lshl_add_u32 v25, v26, 5, v25")
    e(f"v_bfe_u32 v26, v{vL}, 3, 1")
    e("v_lshl_add_u32 v25, v26, 6, v25")
    e("v_lshl_add_u32 v25, v24, 7, v25")
    e(f"v_add_u32 v118, s{s7_}, v25")
    e("v_xor_b32 v119, 64, v118")
    e(f"s_lshl_b32 s{s0}, s{sT}, 11")
    e(f"s_lshl3_add_u32 s{s0}, s2, s{s0}")
    e(f"s_add_u32 s{s0}, s{s0}, {WS_FP}")
    e(f"v_mov_b32 v{vPF}, s{s0}")


def pack_finish():
    k.wait(vm="all")
    for n in range(3):
        for ff in range(2):
            r = WOR + 8 * n + 4 * ff
            k.lds(f"ds_read_b64_tr_b16 {vr(r, 2)}, v{118 + ff} offset:{PACK + n * 2048}")
            k.lds(f"ds_read_b64_tr_b16 {vr(r + 2, 2)}, v{118 + ff} offset:{PACK + n * 2048 + 1024}")
    k.wait(lg="all")
    for n in range(3):
        for ff in range(2):
            r = WOR + 8 * n + 4 * ff
            k.vmem(f"buffer_store_dwordx4 {vr(r, 4)}, v{112 + 2 * n + ff}, s[{SWS}:{SWS + 3}], 0 offen sc1")


def q_read_and_zero():
    e(f"s_lshl_b32 s{s1}, s{sF}, 12")
    e(f"s_add_u32 s{s1}, s{s1}, {QF}")
    for i in range(4):
        e(f"s_add_u32 s{s0}, s{sT}, {i + 1}")
        e(f"s_and_b32 s{s0}, s{s0}, 3")
        e(f"s_lshl_b32 s{s0}, s{s0}, 10")
        e(f"s_add_u32 s{s0}, s{s0}, s{s1}")
        e(f"v_add_u32 v10, s{s0}, v{vKA}")
        k.lds(f"ds_read_b128 {vr(QR + 4 * i, 4)}, v10")
    zero_o()


def zero_o():
    for r in range(4):
        e(f"v_mov_b32 v{SB + r}, 0")
    for q in range(4):
        e(f"v_mfma_f32_32x32x16_bf16 {vr(OA + 16 * q, 16)}, {vr(SB, 4)}, {vr(SB, 4)}, 0")


vRW, vRR, vOFA = 10, 13, 14


def red_setup():
    e(f"s_mul_i32 s{s1}, s{sF}, {12 * 2304}")
    e(f"s_add_u32 s{s1}, s{s1}, {RED}")
    for i in range(3):
        e(f"s_add_u32 s{s0}, s{sT}, {i + 1}")
        e(f"s_and_b32 s{s0}, s{s0}, 3")
        e(f"s_mul_i32 s{s0}, s{s0}, {3 * 2304}")
        e(f"s_add_u32 s{s0}, s{s0}, s{s1}")
        e(f"s_add_u32 s{s0}, s{s0}, {i * 2304}")
        e(f"v_add_u32 v{vRW + i}, s{s0}, v{vKA}")
    e(f"s_mul_i32 s{s0}, s{sT}, {3 * 2304}")
    e(f"s_add_u32 s{s0}, s{s0}, s{s1}")
    e(f"v_add_u32 v{vRR}, s{s0}, v{vKA}")
    e(f"v_mul_u32_u24 v15, 12, v{vL}")


def red_send(q):
    o = OA + 16 * q
    k.lds(f"ds_write_b128 v{vRW + q}, {vr(o, 4)}")
    k.lds(f"ds_write_b128 v{vRW + q}, {vr(o + 4, 4)} offset:1024")
    e(f"v_sub_u32 v{o + 9}, v{vRW + q}, v15")
    k.lds(f"ds_write_b32 v{o + 9}, v{o + 8} offset:2048")


def attention(toks, extras):
    toks = dict(toks)

    def qk(ti):
        s, q = ti >> 2, ti & 3
        b = KVB + 12 * (s % NBUF)
        d = SB + 16 * (ti & 1)
        return f"v_mfma_f32_32x32x16_bf16 {vr(d, 16)}, {vr(b, 4)}, {vr(QR + 4 * q, 4)}, 0"

    def pv(ti, half):
        s, q = ti >> 2, ti & 3
        b = KVB + 12 * (s % NBUF) + 4 + 4 * half
        p = SB + 16 * (ti & 1) + 8 * half
        return f"v_smfmac_f32_32x32x32_bf16 {vr(OA + 16 * q, 16)}, {vr(b, 4)}, {vr(p, 8)}, v{vIDX}"

    e("s_setprio 3")
    k.wait(vm=toks[0], lg="all")
    flag_store(vPF, vTAG)
    e(qk(0))
    for ti in range(64):
        s, q = ti >> 2, ti & 3
        d = SB + 16 * (ti & 1)
        E = lambda j: e(f"v_exp_f32 v{d + j}, v{d + j}")
        if ti == 32:
            e("s_setprio 2")
        if ti == 58:
            e("s_setprio 1")
        if ti == 63:
            e("s_setprio 0")
        E(0); E(1)
        if ti > 0:
            e(pv(ti - 1, 1))
        E(2)
        if q == 0 and s + 2 < 16:
            toks[s + 2] = kv_issue(s + 2)
        if (s, q) in extras:
            extras[(s, q)]()
        E(3); E(4)
        if ti + 1 < 64:
            if q == 3:
                k.wait(vm=toks[s + 1])
            e(qk(ti + 1))
        for j in range(5, 10):
            E(j)
        e(pv(ti, 0))
        for j in range(10, 16):
            E(j)
        if s == 15 and q >= 1:
            red_send(q - 1)
    e(pv(63, 1))


def range_check():
    o = [OA + 16 * q + 8 for q in range(4)]
    e(f"v_min3_f32 v{SB + 1}, v{o[0]}, v{o[1]}, v{o[2]}")
    e(f"v_add_f32 v{SB + 2}, v{o[0]}, v{o[1]}")
    e(f"v_add_f32 v{SB + 2}, v{SB + 2}, v{o[2]}")
    e(f"v_add_f32 v{SB + 2}, v{SB + 2}, v{o[3]}")
    e(f"v_min_f32 v{SB + 1}, v{SB + 1}, v{o[3]}")
    e(f"v_cmp_nge_f32 vcc, 0x5d800000, v{SB + 2}")
    e(f"s_mov_b64 s[{s0}:{s0 + 1}], vcc")
    e(f"v_cmp_nle_f32 vcc, 0x21800000, v{SB + 1}")
    e(f"s_or_b64 vcc, vcc, s[{s0}:{s0 + 1}]")
    if FORCE_SLOW:
        e("s_mov_b64 vcc, -1")
    e(f"v_mov_b32 v{SB + 3}, {MISC}")
    e(f"v_mov_b32 v{SB + 4}, 1")
    e("s_mov_b64 exec, vcc")
    k.lds(f"ds_write_b32 v{SB + 3}, v{SB + 4}")
    e("s_mov_b64 exec, -1")


def attn_reduce():
    o = OA + 48
    e(f"v_mov_b32 v{SB + 3}, {MISC}")
    e(f"v_sub_u32 v{SB + 5}, v{vRR}, v15")
    k.lds(f"ds_read_b32 v{SB + 4}, v{SB + 3}")
    tl = []
    for i in range(3):
        tl.append(k.lds(f"ds_read_b32 v{SB + 6 + i}, v{SB + 5} offset:{i * 2304 + 2048}"))
    td = []
    for i in range(3):
        k.lds(f"ds_read_b128 {vr(OA + 8 * i, 4)}, v{vRR} offset:{i * 2304}")
        td.append(k.lds(f"ds_read_b128 {vr(OA + 8 * i + 4, 4)}, v{vRR} offset:{i * 2304 + 1024}"))
    e(f"s_lshl2_add_u32 s{s0}, s{sRB}, s{sT}")
    e(f"s_lshl_b32 s{s0}, s{s0}, 5")
    e(f"s_lshl1_add_u32 s{s1}, s{sHP}, s{sF}")
    e(f"s_add_u32 s{s0}, s{s0}, s{s1}")
    e(f"s_lshl_b32 s{s1}, s{s0}, 7")
    e(f"s_add_u32 s{s1}, s{s1}, {WS_FO}")
    e(f"v_mov_b32 v{vOFA}, s{s1}")
    e(f"s_lshl_b32 s{s0}, s{s0}, 10")
    e(f"s_add_u32 s{s0}, s{s0}, {WS_O}")
    k.wait(lg=tl[2])
    e(f"v_cmp_ne_u32 vcc, 0, v{SB + 4}")
    e("s_cbranch_vccnz L_slow")
    e(f"v_add_f32 v{SB + 6}, v{SB + 6}, v{SB + 7}")
    e(f"v_add_f32 v{SB + 8}, v{SB + 8}, v{o + 8}")
    e(f"v_add_f32 v{SB + 6}, v{SB + 6}, v{SB + 8}")
    e(f"v_rcp_f32 v{SB + 6}, v{SB + 6}")
    for i in range(3):
        k.wait(lg=td[i])
        for r in range(0, 8, 2):
            e(f"v_pk_add_f32 {vr(o + r, 2)}, {vr(o + r, 2)}, {vr(OA + 8 * i + r, 2)}")
    for r in range(0, 8, 2):
        e(f"v_pk_mul_f32 {vr(o + r, 2)}, {vr(o + r, 2)}, {vr(SB + 6, 2)} op_sel_hi:[1,0]")
    for r in range(4):
        e(f"v_cvt_pk_bf16_f32 v{SB + 12 + r}, v{o + 2 * r}, v{o + 2 * r + 1}")
    return k.vmem(f"buffer_store_dwordx4 {vr(SB + 12, 4)}, v{vKA}, s[{SWS}:{SWS + 3}], s{s0} offen sc1")


def slow_path():
    k.label("L_slow")
    MX = 112
    e("s_waitcnt lgkmcnt(0)")
    e("s_barrier")
    e(f"v_mov_b32 v{SB + 4}, 0")
    e(f"ds_write_b32 v{SB + 3}, v{SB + 4}")
    for q in range(4):
        e(f"v_mov_b32 v{MX + q}, 0xff7fffff")
    b = KVB

    def load(with_v):
        e(f"s_lshl_b32 s{s0}, s{s5_}, 13")
        e(f"s_add_u32 s{s0}, s{s0}, s{sKVB}")
        e(f"buffer_load_dwordx4 {vr(b, 4)}, v{vKA}, s[{SWS}:{SWS + 3}], s{s0} offen sc1")
        if with_v:
            e(f"s_mov_b64 exec, s[{sVMASK}:{sVMASK + 1}]")
            e(f"buffer_load_dwordx4 {vr(b + 4, 4)}, v{vVA}, s[{SWS}:{SWS + 3}], s{s0} offen offset:1024 sc1")
            e(f"buffer_load_dwordx4 {vr(b + 8, 4)}, v{vVA}, s[{SWS}:{SWS + 3}], s{s0} offen offset:1536 sc1")
            e("s_mov_b64 exec, -1")
        e("s_waitcnt vmcnt(0)")
    e(f"s_mov_b32 s{s5_}, 0")
    k.label("L_slow1")
    load(False)
    for q in range(4):
        e(f"v_mfma_f32_32x32x16_bf16 {vr(SB, 16)}, {vr(b, 4)}, {vr(QR + 4 * q, 4)}, 0")
        for r in range(0, 16, 2):
            e(f"v_max3_f32 v{MX + q}, v{MX + q}, v{SB + r}, v{SB + r + 1}")
        e("s_nop 1")
    e(f"s_add_u32 s{s5_}, s{s5_}, 1")
    e(f"s_cmp_lt_u32 s{s5_}, 16")
    e("s_cbranch_scc1 L_slow1")
    e(f"v_and_b32 v{SB + 1}, 31, v{vL}")
    for q in range(4):
        e(f"v_mov_b32 v{SB}, v{MX + q}")
        e(f"v_permlane32_swap_b32 v{SB}, v{MX + q}")
        e(f"v_max_f32 v{MX + q}, v{MX + q}, v{SB}")
        e(f"s_add_u32 s{s0}, s{sT}, {q + 1}")
        e(f"s_and_b32 s{s0}, s{s0}, 3")
        e(f"s_lshl2_add_u32 s{s0}, s{sF}, s{s0}")
        e(f"s_lshl_b32 s{s0}, s{s0}, 9")
        e(f"s_add_u32 s{s0}, s{s0}, {RED}")
        e(f"v_lshl_add_u32 v{MX + 4 + q}, v{SB + 1}, 4, s{s0}")
        e(f"s_lshl_b32 s{s0}, s{sT}, 2")
        e(f"v_add_u32 v{SB + 2}, s{s0}, v{MX + 4 + q}")
        e(f"ds_write_b32 v{SB + 2}, v{MX + q}")
    e("s_waitcnt lgkmcnt(0)")
    e("s_barrier")
    for q in range(4):
        e(f"ds_read_b128 {vr(SB + 4 * q, 4)}, v{MX + 4 + q}")
    e("s_waitcnt lgkmcnt(0)")
    for q in range(4):
        e(f"v_max3_f32 v{MX + q}, v{SB + 4 * q}, v{SB + 4 * q + 1}, v{SB + 4 * q + 2}")
        e(f"v_max_f32 v{MX + q}, v{MX + q}, v{SB + 4 * q + 3}")
    e("s_barrier")
    zero_o()
    e(f"s_mov_b32 s{s5_}, 0")
    k.label("L_slow2")
    load(True)
    for q in range(4):
        e(f"v_mfma_f32_32x32x16_bf16 {vr(SB, 16)}, {vr(b, 4)}, {vr(QR + 4 * q, 4)}, 0")
        for r in range(16):
            e(f"v_sub_f32 v{SB + r}, v{SB + r}, v{MX + q}")
        for r in range(16):
            e(f"v_exp_f32 v{SB + r}, v{SB + r}")
        e(f"v_smfmac_f32_32x32x32_bf16 {vr(OA + 16 * q, 16)}, {vr(b + 4, 4)}, {vr(SB, 8)}, v{vIDX}")
        e(f"v_smfmac_f32_32x32x32_bf16 {vr(OA + 16 * q, 16)}, {vr(b + 8, 4)}, {vr(SB + 8, 8)}, v{vIDX}")
    e("s_nop 15")
    e(f"s_add_u32 s{s5_}, s{s5_}, 1")
    e(f"s_cmp_lt_u32 s{s5_}, 16")
    e("s_cbranch_scc1 L_slow2")
    for q in range(3):
        red_send(q)
    e("s_waitcnt lgkmcnt(0)")
    e("s_barrier")
    e("s_branch L_reduce")


def finish():
    k.label("L_finish")
    if STOP is None:
        e(f"s_or_b32 s{s0}, s2, s{sWv}")
        e(f"s_cmp_lg_u32 s{s0}, 0")
        e("s_cbranch_scc1 L_nogen")
        e(f"v_mov_b32 v10, {WS_G}")
        flag_store(10, vTAG)
        k.label("L_nogen")
    if DEV:
        stamp("end")
        assert len(stamp_names) <= 30
        e(f"s_lshl3_add_u32 s{s0}, s2, s{sWv}")
        e(f"s_lshl_b32 s{s0}, s{s0}, 7")
        e(f"s_add_u32 s{s0}, s{s0}, {WS_TS}")
        e("s_mov_b64 exec, 1")
        e("v_mov_b32 v10, 0")
        for i in range(len(stamp_names)):
            e(f"v_mov_b32 v11, s{sSTAMP0 + i}")
            e(f"buffer_store_dword v11, v10, s[{SWS}:{SWS + 3}], s{s0} offen offset:{4 * i}")
        e(f"v_mov_b32 v11, s{sABORT}")
        e(f"buffer_store_dword v11, v10, s[{SWS}:{SWS + 3}], s{s0} offen offset:124")
    k.label("L_end")
    e("s_endpgm")


def main():
    entry()
    toks = [a_issue(0), a_issue(1), a_issue(2)]
    setup_rest()
    if DEV:
        for i in range(1, 30):
            e(f"s_mov_b32 s{sSTAMP0 + i}, 0")
    vm0 = k.vm
    e(f"s_bitcmp1_b32 s{sHP}, 0")
    e("s_cbranch_scc1 L_typeV")
    phase_a(0, toks, vm0)
    e("s_branch L_a_done")
    k.label("L_typeV")
    phase_a(1, toks, vm0)
    k.label("L_a_done")
    e("s_barrier")
    stamp("kv_stored")
    vm1 = k.vm
    e(f"s_cmp_lg_u32 s{sF}, 0")
    e("s_cbranch_scc1 L_f1")
    q_pass()
    attn_setup()
    k.wait(lg="all")
    e("s_barrier")
    e("s_branch L_attn")
    k.label("L_f1")
    k.vm = vm1
    e(f"s_cmp_eq_u32 s{sWv}, 7")
    e("s_cbranch_scc1 L_w7")
    pack_issue()
    k.wait(vm=vm1)
    flag_store(63, vTAG)
    attn_setup()
    e("s_barrier")
    pack_finish()
    e("s_branch L_attn")
    k.label("L_w7")
    k.wait(vm="all")
    flag_store(63, vTAG)
    e(f"v_mov_b32 v{vPF}, {OOB}")
    attn_setup()
    e("s_barrier")
    k.label("L_attn")
    stamp("q_done")
    q_read_and_zero()
    kt = {0: kv_issue(0), 1: kv_issue(1)}
    stamp("kv_seen")
    import phase_c
    phase_c.bind(globals())
    extras = phase_c.attn_extras()
    extras[(13, 1)] = red_setup
    attention(kt, extras)
    range_check()
    k.wait(lg="all")
    e("s_barrier")
    stamp("attn_done")
    k.label("L_reduce")
    otok = attn_reduce()
    if STOP == "attn":
        k.wait(vm="all")
        flag_store(vOFA, vTAG)
        stamp("o_flag")
    else:
        phase_c.run(otok)
    finish()
    for ln in k.tail:
        k.L.append(ln)
    kvpoll_routine()
    phase_c.routines()
    slow_path()
    k.label("L_code_end")
    e("s_endpgm")
    body, npad = pad_hazards(k.L, verbose="-v" in sys.argv)
    hdr = open("cdna_kernels/" + NAME + ".s.ref").read().split("\n")
    head = []
    for ln in hdr:
        if ln.startswith("; @launch"):
            head.append(f"; @launch grid=(256,1,1) block=(512,1,1) lds={LDS_SIZE}")
        else:
            head.append(ln)
        if ln.startswith(NAME + "_kernel:"):
            break
    txt = "\n".join(head) + "\n" + "\n".join(("" if l.endswith(":") else "    ") + l for l in body) + f"""
.section .rodata,"a"
.p2align 6
.amdhsa_kernel {NAME}_kernel
  .amdhsa_next_free_vgpr 256
  .amdhsa_next_free_sgpr 102
  .amdhsa_accum_offset 256
  .amdhsa_group_segment_fixed_size 0
  .amdhsa_kernarg_size 88
  .amdhsa_user_sgpr_count 2
  .amdhsa_user_sgpr_kernarg_segment_ptr 1
  .amdhsa_system_sgpr_workgroup_id_x 1
  .amdhsa_float_denorm_mode_32 3
.end_amdhsa_kernel
"""
    out = [a for a in sys.argv[1:] if not a.startswith("-")]
    path = out[0] if out else "k.s"
    open(path, "w").write(txt)
    open(path + ".stamps", "w").write("\n".join(stamp_names))
    print("wrote", path, "lines", len(body), "pads", npad)


if __name__ == "__main__":
    main()
```

```python
import sys
from asmlib import K, pad_hazards, vr, sr

NAME = "sequential_preLN__softmax_full_mha__dense_activation_gelu__prompt"
DEV = "--dev" in sys.argv
STOP = None
for a in sys.argv:
    if a.startswith("--stop="):
        STOP = a.split("=")[1]
FORCE_SLOW = "--force-slow" in sys.argv
DBG = ([a.split("=")[1] for a in sys.argv if a.startswith("--dbg=")] + [""])[0]
FINE = ([a.split("=")[1] for a in sys.argv if a.startswith("--fine=")] + [""])[0]
CLK = "s_memtime" if "--cyc" in sys.argv else "s_memrealtime"

WS_G = 0x0
WS_FKV = 0x10000
WS_FO = 0x50000
WS_FH = 0x90000
WS_FG = 0xD0000
WS_FP = 0x150000
WS_TS = 0x160000
WS_KV = 0x200000
WS_O = 0x600000
WS_H = 0x800000
WS_GD = 0xA00000
WS_WO = 0x1000000
WS_W1 = 0x1080000
WS_W2 = 0x1200000
WS_SIZE = 0x1400000
OOB = 0x40000000

XRING = 0
WRING = 65536
QF = 98304
MISC = 106496
EXCH = 108544
WQ = 131072
PACK = 0
W1L = 0
AUG = 98304
RED = 108544
OST = 108544
C1X = 141312
LDS_SIZE = 163840

sONES = 3
SX, SW, SWS, SOUT, ST = 4, 8, 12, 16, 20
pWO, pW1, pB1, pW2, pB2 = 28, 32, 34, 36, 38
sTAG = 46
sWv, sT, sF, sXCD, sJ, sRB, sHP, sC = 48, 49, 50, 51, 52, 53, 54, 55
sXB, sWB = 56, 57
s0, s1, s2_, s3_, s4_, s5_, s6_, s7_ = 58, 59, 60, 61, 62, 63, 64, 65
sMASK, sABORT, sKVB, sVMASK = 66, 67, 68, 40
sRET = 42
sROT = 69
sSTMP = 24
sSTAMP0 = 70

k = K()
e = k.e
stamp_names = []


def stamp(name):
    if not DEV:
        return
    if name not in stamp_names:
        stamp_names.append(name)
    i = stamp_names.index(name)
    assert i < 30
    e(f"{CLK} s[{sSTMP}:{sSTMP + 1}]")
    e("s_waitcnt lgkmcnt(0)")
    e(f"s_mov_b32 s{sSTAMP0 + i}, s{sSTMP}")


def bf16_rne(dst, src):
    e(f"v_cvt_pk_bf16_f32 v{dst}, v{src}, v{src}")
    e(f"v_and_b32 v{dst}, 0xffff0000, v{dst}")


def ln_stats(vsum, vsq, vmean, vsd, vrstd, tmp):
    e(f"v_mul_f32 v{tmp}, 0x3b000000, v{vsum}")
    e(f"v_mul_f32 v{vsq}, 0x3b000000, v{vsq}")
    e(f"v_fma_f32 v{vsq}, -v{tmp}, v{tmp}, v{vsq}")
    e(f"v_max_f32 v{vsq}, 0, v{vsq}")
    bf16_rne(vmean, tmp)
    bf16_rne(vsq, vsq)
    e(f"v_add_f32 v{vsq}, 0x3727c5ac, v{vsq}")
    bf16_rne(vsq, vsq)
    e(f"v_sqrt_f32 v{vsq}, v{vsq}")
    bf16_rne(vsd, vsq)
    e(f"v_rcp_f32 v{vrstd}, v{vsd}")


def poll(vaddr, vtmp, cond, name):
    lp = k.newlabel("Lpoll_" + name)
    dn = k.newlabel("Lpolld_" + name)
    k.label(lp)
    e(f"buffer_load_dwordx2 v[{vtmp}:{vtmp + 1}], v{vaddr}, s[{SWS}:{SWS + 3}], 0 offen sc1")
    e(f"s_add_u32 s{sABORT}, s{sABORT}, 1")
    e(f"s_cmp_gt_u32 s{sABORT}, 0x20000")
    e(f"s_cbranch_scc1 {dn}")
    e("s_waitcnt vmcnt(0)")
    e(f"v_cmp_eq_u64 vcc, s[{sTAG}:{sTAG + 1}], v[{vtmp}:{vtmp + 1}]")
    cond()
    e(f"s_cbranch_scc0 {lp}")
    k.label(dn)
    e("s_waitcnt vmcnt(0)")


def flag_store(vaddr, vtag):
    e("s_mov_b64 exec, 1")
    tok = k.vmem(f"buffer_store_dwordx2 v[{vtag}:{vtag + 1}], v{vaddr}, s[{SWS}:{SWS + 3}], 0 offen sc1")
    e("s_mov_b64 exec, -1")
    return tok


vL = 1
vXD, vWD, vQD = 2, 3, 4
vXR, vWR, vQR = 5, 9, 13
vCS, vSUM, vSQ = 17, 18, 19
vMEAN, vRSTD = 20, 21
vTAG = 22
WF, ACC, QACC, XF = 64, 96, 112, 128


def entry():
    e("s_cmp_ge_u32 s2, 0x100")
    e("s_cbranch_scc1 L_end")
    e(f"s_load_dwordx2 s[{SX}:{SX + 1}], s[0:1], 0")
    e(f"s_load_dwordx2 s[{SW}:{SW + 1}], s[0:1], 8")
    e(f"s_load_dwordx2 s[{SWS}:{SWS + 1}], s[0:1], 80")
    if DEV:
        e(f"{CLK} s[{sSTMP + 2}:{sSTMP + 3}]")
    e("v_lshrrev_b32 v5, 6, v0")
    e("v_lshrrev_b32 v6, 3, v0")
    e(f"v_readfirstlane_b32 s{sWv}, v5")
    e("v_lshrrev_b32 v7, 4, v0")
    e("v_xor_b32 v8, v0, v7")
    e("v_and_b32 v8, 7, v8")
    e("v_lshlrev_b32 v8, 4, v8")
    e(f"v_lshl_add_u32 v{vXD}, v6, 10, v8")
    e("v_lshrrev_b32 v7, 2, v0")
    e("v_and_b32 v7, 4, v7")
    e("v_xor_b32 v7, v0, v7")
    e("v_and_b32 v7, 7, v7")
    e("v_lshlrev_b32 v7, 4, v7")
    e("v_mul_u32_u24 v6, 0xc00, v6")
    e(f"v_add_u32 v{vWD}, v6, v7")
    e(f"s_and_b32 s{sXCD}, s2, 7")
    e(f"s_lshr_b32 s{sJ}, s2, 3")
    e(f"s_and_b32 s{s0}, s{sJ}, 1")
    e(f"s_lshl1_add_u32 s{sRB}, s{sXCD}, s{s0}")
    e(f"s_lshr_b32 s{sHP}, s{sJ}, 1")
    e(f"s_lshl2_add_u32 s{sC}, s{s0}, s{sHP}")
    e(f"s_add_u32 s{sC}, s{sC}, s{sXCD}")
    e(f"s_and_b32 s{sC}, s{sC}, 7")
    e(f"s_mov_b32 s{sROT}, s{sC}")
    e(f"s_lshl_b32 s{sXB}, s{sRB}, 17")
    e(f"s_and_b32 s{s0}, s{sHP}, 1")
    e(f"s_lshr_b32 s{s1}, s{sHP}, 1")
    e(f"s_lshl3_add_u32 s{s0}, s{s0}, s{s1}")
    e(f"s_lshl_b32 s{s0}, s{s0}, 7")
    e(f"s_add_u32 s{sWB}, s{s0}, 0x400")
    e(f"s_mov_b32 s{SX + 2}, 0x200000")
    e(f"s_mov_b32 s{SX + 3}, 0x20000")
    e(f"s_mov_b32 s{SW + 2}, 0x180000")
    e(f"s_mov_b32 s{SW + 3}, 0x20000")
    e(f"s_lshl_b32 s{s7_}, s{sWv}, 10")
    e("s_waitcnt lgkmcnt(0)")


def a_issue(i):
    slot = i & 3
    e(f"s_lshl_b32 s{s0}, s{sC}, 7")
    e(f"s_add_u32 s{s0}, s{s0}, s{sXB}")
    e(f"s_add_u32 m0, s{s7_}, {XRING + slot * 16384}")
    e(f"s_mul_i32 s{s1}, s{sC}, 0x30000")
    k.vmem(f"buffer_load_dwordx4 v{vXD}, s[{SX}:{SX + 3}], s{s0} offen lds")
    e(f"s_add_u32 m0, s{s7_}, {WRING + slot * 8192}")
    e(f"s_add_u32 s{s1}, s{s1}, s{sWB}")
    k.vmem(f"buffer_load_dwordx4 v{vWD}, s[{SW}:{SW + 3}], s{s1} offen lds")
    e(f"s_add_u32 m0, s{s7_}, {XRING + slot * 16384 + 8192}")
    e(f"s_add_u32 s{s0}, s{s0}, 0x10000")
    tok = k.vmem(f"buffer_load_dwordx4 v{vXD}, s[{SX}:{SX + 3}], s{s0} offen lds")
    e(f"s_add_u32 s{sC}, s{sC}, 1")
    e(f"s_and_b32 s{sC}, s{sC}, 7")
    return tok


def setup_rest():
    e(f"s_load_dwordx2 s[{sTAG}:{sTAG + 1}], s[{SWS}:{SWS + 1}], {WS_G}")
    e(f"s_load_dwordx4 s[28:31], s[0:1], 16")
    e(f"s_load_dwordx8 s[32:39], s[0:1], 32")
    e(f"s_load_dwordx2 s[{SOUT}:{SOUT + 1}], s[0:1], 64")
    e(f"s_mov_b32 s{SWS + 2}, {WS_SIZE}")
    e(f"s_mov_b32 s{SWS + 3}, 0x20000")
    e(f"s_mov_b32 s{SOUT + 2}, 0x200000")
    e(f"s_mov_b32 s{SOUT + 3}, 0x20000")
    e(f"s_mov_b32 s{sONES}, 0x3f803f80")
    e(f"s_mov_b32 s{sABORT}, 0")
    e(f"s_and_b32 s{sT}, s{sWv}, 3")
    e(f"s_lshr_b32 s{sF}, s{sWv}, 2")
    e(f"v_and_b32 v{vL}, 63, v0")
    e(f"s_getpc_b64 s[{ST}:{ST + 1}]")
    k.label("L_pc")
    e(f"s_mov_b32 s{ST + 2}, L_code_end-L_pc")
    e(f"s_mov_b32 s{ST + 3}, 0x20000")
    e(f"s_lshl3_add_u32 s{s0}, s{sJ}, s{sWv}")
    e(f"s_lshl_b32 s{s0}, s{s0}, 8")
    e(f"v_lshlrev_b32 v24, 2, v{vL}")
    k.vmem(f"buffer_load_dword v25, v24, s[{ST}:{ST + 3}], s{s0} offen")
    e(f"s_lshl_b32 s{s0}, s{sF}, 1")
    e(f"s_xor_b32 s{s0}, s{s0}, s{sT}")
    e(f"v_and_b32 v26, 31, v{vL}")
    e(f"v_lshrrev_b32 v27, 5, v{vL}")
    e("v_bfe_u32 v28, v26, 1, 3")
    e("v_xor_b32 v28, v28, v27")
    e(f"s_lshl_b32 s{s1}, s{s0}, 1")
    e(f"v_xor_b32 v28, s{s1}, v28")
    e("v_lshlrev_b32 v28, 4, v28")
    e(f"s_lshl_b32 s{s1}, s{sT}, 12")
    e(f"v_lshl_add_u32 v29, v26, 7, s{s1}")
    e(f"v_add_u32 v{vXR}, v28, v29")
    for ks in range(1, 4):
        e(f"v_xor_b32 v{vXR + ks}, {ks * 32}, v{vXR}")
    e(f"v_bfe_u32 v28, v{vL}, 2, 2")
    e("v_lshl_add_u32 v28, v27, 3, v28")
    e(f"v_and_b32 v29, 3, v{vL}")
    e("v_lshlrev_b32 v29, 3, v29")
    e(f"v_bfe_u32 v30, v{vL}, 4, 1")
    e("v_lshl_add_u32 v29, v30, 5, v29")
    e(f"v_bfe_u32 v30, v{vL}, 3, 1")
    e(f"v_xor_b32 v30, s{sF}, v30")
    e("v_lshl_add_u32 v30, v30, 6, v29")
    e("v_lshl_add_u32 v30, v28, 7, v30")
    e(f"s_lshl_b32 s{s1}, s{s0}, 11")
    e(f"s_add_u32 s{s1}, s{s1}, {WRING}")
    e(f"v_add_u32 v{vWR}, s{s1}, v30")
    for ks in range(1, 4):
        e(f"v_xor_b32 v{vWR + ks}, {ks * 2048}, v{vWR}")
    e("v_lshl_add_u32 v30, v28, 6, v29")
    e(f"s_lshl_b32 s{s1}, s{s0}, 10")
    e(f"s_add_u32 s{s1}, s{s1}, {WQ}")
    e(f"v_add_u32 v{vQR}, s{s1}, v30")
    for ks in range(1, 4):
        e(f"v_xor_b32 v{vQR + ks}, {ks * 1024}, v{vQR}")
    e(f"v_lshrrev_b32 v28, 2, v{vL}")
    e("v_mul_u32_u24 v28, 0xc00, v28")
    e(f"v_and_b32 v29, 3, v{vL}")
    e(f"v_lshl_add_u32 v{vQD}, v29, 4, v28")
    e(f"v_mov_b32 v{vCS}, 0")
    e(f"v_mov_b32 v{vSUM}, 0")
    e(f"v_mov_b32 v{vSQ}, 0")
    e(f"v_mov_b32 v28, {MISC}")
    e(f"ds_write_b32 v28, v{vCS}")
    e("s_waitcnt lgkmcnt(0)")
    e(f"s_mul_i32 s{sTAG}, s{sTAG}, 0x9e3779b1")
    e(f"s_add_u32 s{sTAG}, s{sTAG}, 0x7f4a7c15")
    e(f"s_add_u32 s{sTAG + 1}, s{sTAG + 1}, 0x632be5ab")
    e(f"v_mov_b32 v{vTAG}, s{sTAG}")
    e(f"v_mov_b32 v{vTAG + 1}, s{sTAG + 1}")
    if DEV:
        stamp_names.append("start")
        e(f"s_mov_b32 s{sSTAMP0}, s{sSTMP + 2}")


def wq_issue():
    e(f"s_add_u32 s{s0}, s{sROT}, s{sWv}")
    e(f"s_and_b32 s{s0}, s{s0}, 7")
    e(f"s_mul_i32 s{s0}, s{s0}, 0x30000")
    e(f"s_lshl_b32 s{s1}, s{sHP}, 6")
    e(f"s_add_u32 s{s0}, s{s0}, s{s1}")
    e(f"s_lshl_b32 s{s1}, s{sWv}, 12")
    tok = None
    for q in range(4):
        e(f"s_add_u32 m0, s{s1}, {WQ + q * 1024}")
        if q:
            e(f"s_add_u32 s{s0}, s{s0}, 0xc000")
        tok = k.vmem(f"buffer_load_dwordx4 v{vQD}, s[{SW}:{SW + 3}], s{s0} offen lds")
    return tok


def phase_a(typ, toks, merge_vm):
    toks = list(toks)
    k.vm = merge_vm

    def reads(i):
        slot = i & 3
        for ks in range(4):
            k.lds(f"ds_read_b128 {vr(XF + 16 * i + 4 * ks, 4)}, v{vXR + ks} offset:{slot * 16384}")
            w = WF + 16 * (i & 1) + 4 * ks
            k.lds(f"ds_read_b64_tr_b16 {vr(w, 2)}, v{vWR + ks} offset:{slot * 8192}")
            k.lds(f"ds_read_b64_tr_b16 {vr(w + 2, 2)}, v{vWR + ks} offset:{slot * 8192 + 512}")

    def dots(i):
        d = []
        for r in range(8):
            x = XF + 16 * i + r
            d.append(f"v_dot2c_f32_bf16 v{vSUM}, s{sONES}, v{x}")
            d.append(f"v_dot2c_f32_bf16 v{vSQ}, v{x}, v{x}")
            if r & 1:
                d.append(f"v_dot2c_f32_bf16 v{vCS}, s{sONES}, v{WF + 16 * (i & 1) + (r >> 1)}")
        return d

    def mf(i, ks):
        x = vr(XF + 16 * i + 4 * ks, 4)
        w = vr(WF + 16 * (i & 1) + 4 * ks, 4)
        c = "0" if (i == 0 and ks == 0) else vr(ACC, 16)
        a, b = (w, x) if typ == 0 else (x, w)
        return f"v_mfma_f32_32x32x16_bf16 {vr(ACC, 16)}, {a}, {b}, {c}"

    wq_tok = None
    for i in range(8):
        if FINE == "a":
            stamp(f"a{i}_pre")
        k.wait(vm=toks[i], lg="all")
        e("s_barrier")
        if FINE == "a":
            stamp(f"a{i}_bar")
        if i + 3 < 8:
            toks.append(a_issue(i + 3))
        elif i == 5:
            wq_tok = wq_issue()
        reads(i)
        if i > 0:
            d = dots(i - 1)
            for ks in range(4):
                e(mf(i - 1, ks))
                for x in d[5 * ks:5 * ks + 5]:
                    e(x)
    e(f"v_and_b32 v26, 31, v{vL}")
    e(f"v_lshrrev_b32 v27, 5, v{vL}")
    e(f"s_lshl_b32 s{s0}, s{sT}, 10")
    e(f"s_add_u32 s{s0}, s{s0}, {EXCH}")
    e(f"v_lshl_add_u32 v28, v26, 5, s{s0}")
    e(f"s_lshl_b32 s{s0}, s{sF}, 4")
    e(f"v_lshl_add_u32 v29, v27, 3, s{s0}")
    e("v_add_u32 v29, v29, v28")
    e(f"s_lshl_b32 s{s0}, s{sF}, 10")
    e(f"s_add_u32 s{s0}, s{s0}, {EXCH + 4096}")
    e(f"v_lshl_add_u32 v30, v26, 5, s{s0}")
    e(f"s_lshl_b32 s{s0}, s{sT}, 3")
    e(f"v_lshl_add_u32 v31, v27, 2, s{s0}")
    e("v_add_u32 v31, v31, v30")
    e(f"s_lshl_b32 s{s0}, s{sWv}, 8")
    e(f"s_add_u32 s{s0}, s{s0}, {EXCH + 6144}")
    e(f"v_lshl_add_u32 v60, v26, 2, s{s0}")
    e(f"v_lshl_add_u32 v61, v27, 4, s{s0}")
    k.wait(lg="all")
    e(mf(7, 0))
    for x in dots(7):
        e(x)
    e(mf(7, 1))
    e(mf(7, 2))
    k.lds(f"ds_write_b64 v29, v[{vSUM}:{vSQ}]")
    k.lds(f"ds_write_b32 v31, v{vCS}")
    e(mf(7, 3))
    k.wait(lg="all")
    e("s_barrier")
    stamp("a_loop")
    k.lds("ds_read_b128 v[32:35], v28")
    t1 = k.lds("ds_read_b128 v[36:39], v28 offset:16")
    k.lds("ds_read_b128 v[40:43], v30")
    t2 = k.lds("ds_read_b128 v[44:47], v30 offset:16")
    e(f"s_lshr_b32 s{s0}, s{sHP}, 1")
    e(f"s_lshl1_add_u32 s{s0}, s{s0}, s{sF}")
    e(f"s_lshl2_add_u32 s{s1}, s{sRB}, s{sT}")
    e(f"s_lshl_b32 s{s2_}, s{s0}, 18")
    e(f"s_lshl_b32 s{s1}, s{s1}, 11")
    e(f"s_add_u32 s{s2_}, s{s2_}, s{s1}")
    e(f"s_add_u32 s{s2_}, s{s2_}, {WS_KV}")
    e(f"s_add_u32 s{s3_}, s{s2_}, 0x20000")
    e(f"s_lshl2_add_u32 s{s0}, s{s0}, s{sT}")
    e(f"s_lshl_b32 s{s0}, s{s0}, 5")
    e(f"s_add_u32 s{s0}, s{s0}, s{sRB}")
    e(f"s_lshl_b32 s{s0}, s{s0}, 7")
    e(f"s_add_u32 s{s0}, s{s0}, {WS_FKV + typ * 16 * 128}")
    e(f"v_mov_b32 v63, s{s0}")
    if typ == 0:
        e(f"v_lshrrev_b32 v48, 1, v{vL}")
        e(f"v_xor_b32 v48, v48, v{vL}")
        e("v_and_b32 v48, 4, v48")
        e("v_mul_u32_u24 v48, 3, v48")
        e(f"v_xor_b32 v48, v48, v{vL}")
        e("v_lshlrev_b32 v62, 4, v48")
    else:
        e(f"v_and_b32 v48, 15, v{vL}")
        e("v_lshl_add_u32 v48, v27, 4, v48")
        e("v_lshlrev_b32 v48, 4, v48")
        e(f"v_bfe_u32 v49, v{vL}, 4, 1")
        e("v_lshl_add_u32 v62, v49, 17, v48")
    k.wait(lg=t1)
    e("v_add_f32 v32, v32, v34")
    e("v_add_f32 v33, v33, v35")
    e("v_add_f32 v36, v36, v38")
    e("v_add_f32 v37, v37, v39")
    e("v_add_f32 v32, v32, v36")
    e("v_add_f32 v33, v33, v37")
    if typ == 0:
        k.wait(lg=t2)
        for a, b in ((40, 41), (42, 43), (44, 45), (46, 47), (40, 42), (44, 46), (40, 44)):
            e(f"v_add_f32 v{a}, v{a}, v{b}")
        k.lds("ds_write_b32 v60, v40")
        for j in range(4):
            k.lds(f"ds_read_b128 {vr(44 + 4 * j, 4)}, v61 offset:{32 * j}")
        ln_stats(32, 33, vMEAN, 34, vRSTD, 35)
        k.wait(lg="all")
        for r in range(16):
            e(f"v_fma_f32 v{44 + r}, -v{vMEAN}, v{44 + r}, v{ACC + r}")
        for r in range(16):
            e(f"v_mul_f32 v{44 + r}, v{vRSTD}, v{44 + r}")
        src = 44
    else:
        ln_stats(32, 33, vMEAN, 34, vRSTD, 35)
        k.lds(f"ds_write2_b32 v60, v{vMEAN}, v{vRSTD} offset0:0 offset1:32")
        for j in range(4):
            k.lds(f"ds_read_b128 {vr(WF + 4 * j, 4)}, v61 offset:{32 * j}")
        for j in range(4):
            k.lds(f"ds_read_b128 {vr(WF + 16 + 4 * j, 4)}, v61 offset:{128 + 32 * j}")
        k.wait(lg=t2)
        for a, b in ((40, 41), (42, 43), (44, 45), (46, 47), (40, 42), (44, 46), (40, 44)):
            e(f"v_add_f32 v{a}, v{a}, v{b}")
        k.wait(lg=k.lg - 4)
        for r in range(16):
            e(f"v_fma_f32 v{44 + r}, -v40, v{WF + r}, v{ACC + r}")
        k.wait(lg="all")
        for r in range(16):
            e(f"v_mul_f32 v{44 + r}, v{WF + 16 + r}, v{44 + r}")
        src = 44
    for r in range(8):
        e(f"v_cvt_pk_bf16_f32 v{ACC + r}, v{src + 2 * r}, v{src + 2 * r + 1}")
        if r == 3:
            off = "" if typ == 0 else " offset:1024"
            k.vmem(f"buffer_store_dwordx4 {vr(ACC, 4)}, v62, s[{SWS}:{SWS + 3}], s{s2_} offen{off} sc1")
    if typ == 0:
        k.vmem(f"buffer_store_dwordx4 {vr(ACC + 4, 4)}, v62, s[{SWS}:{SWS + 3}], s{s3_} offen sc1")
    else:
        k.vmem(f"buffer_store_dwordx4 {vr(ACC + 4, 4)}, v62, s[{SWS}:{SWS + 3}], s{s2_} offen offset:1536 sc1")
    k.wait(vm=wq_tok)


KVB, QR, SB, OA, WOR = 24, 96, 64, 128, 192
vIDX, vKA, vVA, vFA, vPF = 2, 3, 4, 5, 6
vPT = 8
vXRES = 16
NBUF = 3


def attn_setup():
    e(f"v_mov_b32 v{vIDX}, 0xdddd")
    e(f"v_lshlrev_b32 v{vKA}, 4, v{vL}")
    e(f"v_and_b32 v10, 15, v{vL}")
    e(f"v_lshrrev_b32 v11, 5, v{vL}")
    e("v_lshl_add_u32 v11, v11, 4, v10")
    e(f"v_lshlrev_b32 v{vVA}, 4, v11")
    e(f"v_add_u32 v10, s{sRB}, v10")
    e("v_and_b32 v10, 15, v10")
    e(f"v_and_b32 v11, 16, v{vL}")
    e("v_add_u32 v10, v10, v11")
    e(f"s_lshl2_add_u32 s{s0}, s{sHP}, s{sT}")
    e(f"s_lshl_b32 s{s0}, s{s0}, 12")
    e(f"s_add_u32 s{s0}, s{s0}, {WS_FKV}")
    e(f"v_lshl_add_u32 v{vFA}, v10, 7, s{s0}")
    e(f"s_lshl1_add_u32 s{s0}, s{sHP}, s{sF}")
    e(f"s_lshl_b32 s{s0}, s{s0}, 17")
    e(f"s_lshl_b32 s{s1}, s{sT}, 11")
    e(f"s_add_u32 s{s0}, s{s0}, s{s1}")
    e(f"s_add_u32 s{sKVB}, s{s0}, {WS_KV}")
    e(f"s_mov_b32 s{sVMASK}, 0xffff")
    e(f"s_mov_b32 s{sVMASK + 1}, 0xffff")
    e(f"s_mov_b32 s{sMASK}, 0")
    e(f"v_and_b32 v10, 27, v{vL}")
    e("v_cmp_eq_u32 vcc, 16, v10")
    e(f"v_mov_b32 v11, s{sONES}")
    e("v_cndmask_b32 v10, 0, v11, vcc")
    for b in range(NBUF):
        for r in range(4, 12):
            e(f"v_mov_b32 v{KVB + 12 * b + r}, v10")


def kv_issue(s, check=True):
    b = KVB + 12 * (s % NBUF)
    if check:
        stub = k.newlabel("Lkvs")
        ret = k.newlabel("Lkvr")
        e(f"s_bitcmp1_b32 s{sMASK}, {s}")
        e(f"s_cbranch_scc0 {stub}")
        k.label(ret)
        k.tail += [f"{stub}:", f"s_mov_b32 s{s6_}, {s}", f"s_call_b64 s[{sRET}:{sRET + 1}], L_kvpoll", f"s_branch {ret}"]
    e(f"s_add_u32 s{s0}, s{sRB}, {s}")
    e(f"s_and_b32 s{s0}, s{s0}, 15")
    e(f"s_lshl_b32 s{s0}, s{s0}, 13")
    e(f"s_add_u32 s{s0}, s{s0}, s{sKVB}")
    k.vmem(f"buffer_load_dwordx4 {vr(b, 4)}, v{vKA}, s[{SWS}:{SWS + 3}], s{s0} offen sc1")
    e(f"s_mov_b64 exec, s[{sVMASK}:{sVMASK + 1}]")
    k.vmem(f"buffer_load_dwordx4 {vr(b + 4, 4)}, v{vVA}, s[{SWS}:{SWS + 3}], s{s0} offen offset:1024 sc1")
    tok = k.vmem(f"buffer_load_dwordx4 {vr(b + 8, 4)}, v{vVA}, s[{SWS}:{SWS + 3}], s{s0} offen offset:1536 sc1")
    e("s_mov_b64 exec, -1")
    return tok


def kvpoll_routine():
    k.label("L_kvpoll")

    def cond():
        e(f"s_lshr_b32 s{sMASK}, vcc_lo, 16")
        e(f"s_and_b32 s{sMASK}, s{sMASK}, vcc_lo")
        e(f"s_bitcmp1_b32 s{sMASK}, s{s6_}")
    poll(vFA, vPT, cond, "kv")
    e(f"s_setpc_b64 s[{sRET}:{sRET + 1}]")


def q_pass():
    LA = 6
    toks = {}

    def rd(n):
        i, ks = n >> 2, n & 3
        w = WF + 4 * (n & 7)
        k.lds(f"ds_read_b64_tr_b16 {vr(w, 2)}, v{vQR + ks} offset:{i * 4096}")
        toks[n] = k.lds(f"ds_read_b64_tr_b16 {vr(w + 2, 2)}, v{vQR + ks} offset:{i * 4096 + 256}")
    kv_tok = k.vm
    e(f"v_mov_b32 v{vCS}, 0")
    for n in range(LA):
        rd(n)
    for n in range(32):
        k.wait(lg=toks[n])
        w = WF + 4 * (n & 7)
        c = "0" if n == 0 else vr(QACC, 16)
        e(f"v_mfma_f32_32x32x16_bf16 {vr(QACC, 16)}, {vr(w, 4)}, {vr(XF + 4 * n, 4)}, {c}")
        if n + LA < 32:
            rd(n + LA)
        for r in range(4):
            e(f"v_dot2c_f32_bf16 v{vCS}, s{sONES}, v{w + r}")
        if n == 20:
            k.wait(vm=kv_tok)
            flag_store(63, vTAG)
    e(f"v_mov_b32 v40, v{vCS}")
    e(f"v_permlane32_swap_b32 v40, v{vCS}")
    e(f"v_add_f32 v40, v40, v{vCS}")
    k.lds("ds_write_b32 v60, v40")
    for j in range(4):
        k.lds(f"ds_read_b128 {vr(WF + 4 * j, 4)}, v61 offset:{32 * j}")
    e(f"v_mul_f32 v{vRSTD}, 0x3eb8aa3b, v{vRSTD}")
    e(f"s_lshl_b32 s{s0}, s{sT}, 10")
    e(f"s_add_u32 s{s0}, s{s0}, {QF}")
    e(f"v_lshl_add_u32 v60, v{vL}, 4, s{s0}")
    k.wait(lg="all")
    for r in range(16):
        e(f"v_fma_f32 v{WF + r}, -v{vMEAN}, v{WF + r}, v{QACC + r}")
    for r in range(16):
        e(f"v_mul_f32 v{WF + r}, v{vRSTD}, v{WF + r}")
    for r in range(8):
        e(f"v_cvt_pk_bf16_f32 v{QACC + r}, v{WF + 2 * r}, v{WF + 2 * r + 1}")
        if r == 3:
            k.lds(f"ds_write_b128 v60, {vr(QACC, 4)}")
    k.lds(f"ds_write_b128 v60, {vr(QACC + 4, 4)} offset:4096")
    e(f"v_mov_b32 v{vPF}, {OOB}")


def pack_issue():
    def sel(dst, a, b, c):
        e(f"s_cmp_eq_u32 s{sWv}, 5")
        e(f"s_cselect_b32 s{dst}, {b}, {a}")
        if c != a:
            e(f"s_cmp_eq_u32 s{sWv}, 6")
            e(f"s_cselect_b32 s{dst}, {c}, s{dst}")
    sel(ST, f"s{pWO}", f"s{pW1}", f"s{pW2}")
    sel(ST + 1, f"s{pWO + 1}", f"s{pW1 + 1}", f"s{pW2 + 1}")
    e(f"s_mov_b32 s{s0}, 0x158000")
    e(f"s_cmp_eq_u32 s{sWv}, 4")
    e(f"s_cselect_b32 s{ST + 2}, 0x80000, s{s0}")
    e(f"s_mov_b32 s{ST + 3}, 0x20000")
    e(f"s_movk_i32 s{s0}, 0x400")
    e(f"s_cmp_eq_u32 s{sWv}, 5")
    e(f"s_cselect_b32 s{s1}, 0xac0, s{s0}")
    e(f"s_movk_i32 s{s0}, 0x100")
    sel(s2_, f"s{s0}", "704", "688")
    e(f"s_mov_b32 s{s0}, {WS_WO}")
    sel(s3_, f"s{s0}", WS_W1, WS_W2)
    e(f"v_lshrrev_b32 v24, 3, v{vL}")
    e(f"v_mul_u32_u24 v24, s{s1}, v24")
    e(f"v_lshrrev_b32 v25, 2, v{vL}")
    e("v_and_b32 v25, 4, v25")
    e(f"v_xor_b32 v25, v25, v{vL}")
    e("v_and_b32 v25, 7, v25")
    e("v_lshl_add_u32 v24, v25, 4, v24")
    e(f"s_mul_i32 s{s7_}, s{sT}, 6144")
    for n in range(3):
        e(f"s_add_u32 s{s0}, s2, {256 * n}")
        e(f"s_and_b32 s{s4_}, s{s0}, 31")
        e(f"s_lshr_b32 s{s5_}, s{s0}, 5")
        e(f"s_lshr_b32 s{s6_}, s{s0}, 3")
        e(f"s_and_b32 s{sMASK}, s{s0}, 7")
        e(f"s_cmp_eq_u32 s{sWv}, 6")
        e(f"s_cselect_b32 s{s4_}, s{s6_}, s{s4_}")
        e(f"s_cselect_b32 s{s5_}, s{sMASK}, s{s5_}")
        e(f"s_cselect_b32 s{s6_}, 86, 32")
        e(f"s_mul_i32 s{sMASK}, s{s5_}, s{s6_}")
        e(f"s_lshl1_add_u32 s{sMASK}, s{sMASK}, s{s4_}")
        e(f"s_lshl_b32 s{sMASK}, s{sMASK}, 10")
        e(f"s_add_u32 s{sMASK}, s{sMASK}, s{s3_}")
        e(f"s_cmp_lt_u32 s{s0}, s{s2_}")
        e(f"s_cselect_b32 s{sMASK}, s{sMASK}, {OOB}")
        e(f"s_cselect_b32 s{s0}, 0, {OOB}")
        e(f"v_lshl_add_u32 v{112 + 2 * n}, v{vL}, 4, s{sMASK}")
        e(f"s_lshl_b32 s{s6_}, s{s6_}, 10")
        e(f"v_add_u32 v{113 + 2 * n}, s{s6_}, v{112 + 2 * n}")
        e(f"s_mul_i32 s{s4_}, s{s4_}, s{s1}")
        e(f"s_lshl_b32 s{s4_}, s{s4_}, 4")
        e(f"s_lshl_b32 s{s5_}, s{s5_}, 7")
        e(f"s_add_u32 s{s4_}, s{s4_}, s{s5_}")
        e(f"s_add_u32 s{s4_}, s{s4_}, s{s0}")
        e(f"v_add_u32 v25, s{s4_}, v24")
        e(f"s_lshl_b32 s{s5_}, s{s1}, 3")
        e(f"s_add_u32 m0, s{s7_}, {PACK + n * 2048}")
        k.vmem(f"buffer_load_dwordx4 v25, s[{ST}:{ST + 3}], 0 offen lds")
        e(f"v_add_u32 v25, s{s5_}, v25")
        e(f"s_add_u32 m0, s{s7_}, {PACK + n * 2048 + 1024}")
        k.vmem(f"buffer_load_dwordx4 v25, s[{ST}:{ST + 3}], 0 offen lds")
    e(f"v_bfe_u32 v24, v{vL}, 2, 2")
    e(f"v_lshrrev_b32 v25, 5, v{vL}")
    e("v_lshl_add_u32 v24, v25, 2, v24")
    e(f"v_and_b32 v25, 3, v{vL}")
    e("v_lshlrev_b32 v25, 3, v25")
    e(f"v_bfe_u32 v26, v{vL}, 4, 1")
    e("v_lshl_add_u32 v25, v26, 5, v25")
    e(f"v_bfe_u32 v26, v{vL}, 3, 1")
    e("v_lshl_add_u32 v25, v26, 6, v25")
    e("v_lshl_add_u32 v25, v24, 7, v25")
    e(f"v_add_u32 v118, s{s7_}, v25")
    e("v_xor_b32 v119, 64, v118")
    e(f"s_lshl_b32 s{s0}, s{sT}, 11")
    e(f"s_lshl3_add_u32 s{s0}, s2, s{s0}")
    e(f"s_add_u32 s{s0}, s{s0}, {WS_FP}")
    e(f"v_mov_b32 v{vPF}, s{s0}")


def pack_finish():
    k.wait(vm="all")
    for n in range(3):
        for ff in range(2):
            r = WOR + 8 * n + 4 * ff
            k.lds(f"ds_read_b64_tr_b16 {vr(r, 2)}, v{118 + ff} offset:{PACK + n * 2048}")
            k.lds(f"ds_read_b64_tr_b16 {vr(r + 2, 2)}, v{118 + ff} offset:{PACK + n * 2048 + 1024}")
    k.wait(lg="all")
    for n in range(3):
        for ff in range(2):
            r = WOR + 8 * n + 4 * ff
            k.vmem(f"buffer_store_dwordx4 {vr(r, 4)}, v{112 + 2 * n + ff}, s[{SWS}:{SWS + 3}], 0 offen sc1")


def q_read_and_zero():
    e(f"s_lshl_b32 s{s1}, s{sF}, 12")
    e(f"s_add_u32 s{s1}, s{s1}, {QF}")
    for i in range(4):
        e(f"s_add_u32 s{s0}, s{sT}, {i + 1}")
        e(f"s_and_b32 s{s0}, s{s0}, 3")
        e(f"s_lshl_b32 s{s0}, s{s0}, 10")
        e(f"s_add_u32 s{s0}, s{s0}, s{s1}")
        e(f"v_add_u32 v10, s{s0}, v{vKA}")
        k.lds(f"ds_read_b128 {vr(QR + 4 * i, 4)}, v10")
    zero_o()


def zero_o():
    for r in range(4):
        e(f"v_mov_b32 v{SB + r}, 0")
    for q in range(4):
        e(f"v_mfma_f32_32x32x16_bf16 {vr(OA + 16 * q, 16)}, {vr(SB, 4)}, {vr(SB, 4)}, 0")


vRW, vRR, vOFA = 10, 13, 14


def red_setup():
    e(f"s_mul_i32 s{s1}, s{sF}, {12 * 2304}")
    e(f"s_add_u32 s{s1}, s{s1}, {RED}")
    for i in range(3):
        e(f"s_add_u32 s{s0}, s{sT}, {i + 1}")
        e(f"s_and_b32 s{s0}, s{s0}, 3")
        e(f"s_mul_i32 s{s0}, s{s0}, {3 * 2304}")
        e(f"s_add_u32 s{s0}, s{s0}, s{s1}")
        e(f"s_add_u32 s{s0}, s{s0}, {i * 2304}")
        e(f"v_add_u32 v{vRW + i}, s{s0}, v{vKA}")
    e(f"s_mul_i32 s{s0}, s{sT}, {3 * 2304}")
    e(f"s_add_u32 s{s0}, s{s0}, s{s1}")
    e(f"v_add_u32 v{vRR}, s{s0}, v{vKA}")
    e(f"v_mul_u32_u24 v15, 12, v{vL}")


def red_send(q):
    o = OA + 16 * q
    k.lds(f"ds_write_b128 v{vRW + q}, {vr(o, 4)}")
    k.lds(f"ds_write_b128 v{vRW + q}, {vr(o + 4, 4)} offset:1024")
    e(f"v_sub_u32 v{o + 9}, v{vRW + q}, v15")
    k.lds(f"ds_write_b32 v{o + 9}, v{o + 8} offset:2048")


def attention(toks, extras):
    toks = dict(toks)

    def qk(ti):
        s, q = ti >> 2, ti & 3
        b = KVB + 12 * (s % NBUF)
        d = SB + 16 * (ti & 1)
        return f"v_mfma_f32_32x32x16_bf16 {vr(d, 16)}, {vr(b, 4)}, {vr(QR + 4 * q, 4)}, 0"

    def pv(ti, half):
        s, q = ti >> 2, ti & 3
        b = KVB + 12 * (s % NBUF) + 4 + 4 * half
        p = SB + 16 * (ti & 1) + 8 * half
        return f"v_smfmac_f32_32x32x32_bf16 {vr(OA + 16 * q, 16)}, {vr(b, 4)}, {vr(p, 8)}, v{vIDX}"

    e("s_setprio 3")
    k.wait(vm=toks[0], lg="all")
    flag_store(vPF, vTAG)
    e(qk(0))
    for ti in range(64):
        s, q = ti >> 2, ti & 3
        d = SB + 16 * (ti & 1)
        E = lambda j: e(f"v_exp_f32 v{d + j}, v{d + j}")
        if ti == 32:
            e("s_setprio 2")
        if ti == 58:
            e("s_setprio 1")
        if ti == 63:
            e("s_setprio 0")
        E(0); E(1)
        if ti > 0:
            e(pv(ti - 1, 1))
        E(2)
        if q == 0 and s + 2 < 16:
            toks[s + 2] = kv_issue(s + 2)
        if (s, q) in extras:
            extras[(s, q)]()
        E(3); E(4)
        if ti + 1 < 64:
            if q == 3:
                k.wait(vm=toks[s + 1])
            e(qk(ti + 1))
        for j in range(5, 10):
            E(j)
        e(pv(ti, 0))
        for j in range(10, 16):
            E(j)
        if s == 15 and q >= 1:
            red_send(q - 1)
    e(pv(63, 1))


def range_check():
    o = [OA + 16 * q + 8 for q in range(4)]
    e(f"v_min3_f32 v{SB + 1}, v{o[0]}, v{o[1]}, v{o[2]}")
    e(f"v_add_f32 v{SB + 2}, v{o[0]}, v{o[1]}")
    e(f"v_add_f32 v{SB + 2}, v{SB + 2}, v{o[2]}")
    e(f"v_add_f32 v{SB + 2}, v{SB + 2}, v{o[3]}")
    e(f"v_min_f32 v{SB + 1}, v{SB + 1}, v{o[3]}")
    e(f"v_cmp_nge_f32 vcc, 0x5d800000, v{SB + 2}")
    e(f"s_mov_b64 s[{s0}:{s0 + 1}], vcc")
    e(f"v_cmp_nle_f32 vcc, 0x21800000, v{SB + 1}")
    e(f"s_or_b64 vcc, vcc, s[{s0}:{s0 + 1}]")
    if FORCE_SLOW:
        e("s_mov_b64 vcc, -1")
    e(f"v_mov_b32 v{SB + 3}, {MISC}")
    e(f"v_mov_b32 v{SB + 4}, 1")
    e("s_mov_b64 exec, vcc")
    k.lds(f"ds_write_b32 v{SB + 3}, v{SB + 4}")
    e("s_mov_b64 exec, -1")


def attn_reduce():
    o = OA + 48
    e(f"v_mov_b32 v{SB + 3}, {MISC}")
    e(f"v_sub_u32 v{SB + 5}, v{vRR}, v15")
    k.lds(f"ds_read_b32 v{SB + 4}, v{SB + 3}")
    tl = []
    for i in range(3):
        tl.append(k.lds(f"ds_read_b32 v{SB + 6 + i}, v{SB + 5} offset:{i * 2304 + 2048}"))
    td = []
    for i in range(3):
        k.lds(f"ds_read_b128 {vr(OA + 8 * i, 4)}, v{vRR} offset:{i * 2304}")
        td.append(k.lds(f"ds_read_b128 {vr(OA + 8 * i + 4, 4)}, v{vRR} offset:{i * 2304 + 1024}"))
    e(f"s_lshl2_add_u32 s{s0}, s{sRB}, s{sT}")
    e(f"s_lshl_b32 s{s0}, s{s0}, 5")
    e(f"s_lshl1_add_u32 s{s1}, s{sHP}, s{sF}")
    e(f"s_add_u32 s{s0}, s{s0}, s{s1}")
    e(f"s_lshl_b32 s{s1}, s{s0}, 7")
    e(f"s_add_u32 s{s1}, s{s1}, {WS_FO}")
    e(f"v_mov_b32 v{vOFA}, s{s1}")
    e(f"s_lshl_b32 s{s0}, s{s0}, 10")
    e(f"s_add_u32 s{s0}, s{s0}, {WS_O}")
    k.wait(lg=tl[2])
    e(f"v_cmp_ne_u32 vcc, 0, v{SB + 4}")
    e("s_cbranch_vccnz L_slow")
    e(f"v_add_f32 v{SB + 6}, v{SB + 6}, v{SB + 7}")
    e(f"v_add_f32 v{SB + 8}, v{SB + 8}, v{o + 8}")
    e(f"v_add_f32 v{SB + 6}, v{SB + 6}, v{SB + 8}")
    e(f"v_rcp_f32 v{SB + 6}, v{SB + 6}")
    for i in range(3):
        k.wait(lg=td[i])
        for r in range(0, 8, 2):
            e(f"v_pk_add_f32 {vr(o + r, 2)}, {vr(o + r, 2)}, {vr(OA + 8 * i + r, 2)}")
    for r in range(0, 8, 2):
        e(f"v_pk_mul_f32 {vr(o + r, 2)}, {vr(o + r, 2)}, {vr(SB + 6, 2)} op_sel_hi:[1,0]")
    for r in range(4):
        e(f"v_cvt_pk_bf16_f32 v{SB + 12 + r}, v{o + 2 * r}, v{o + 2 * r + 1}")
    return k.vmem(f"buffer_store_dwordx4 {vr(SB + 12, 4)}, v{vKA}, s[{SWS}:{SWS + 3}], s{s0} offen sc1")


def slow_path():
    k.label("L_slow")
    MX = 112
    e("s_waitcnt lgkmcnt(0)")
    e("s_barrier")
    e(f"v_mov_b32 v{SB + 4}, 0")
    e(f"ds_write_b32 v{SB + 3}, v{SB + 4}")
    for q in range(4):
        e(f"v_mov_b32 v{MX + q}, 0xff7fffff")
    b = KVB

    def load(with_v):
        e(f"s_lshl_b32 s{s0}, s{s5_}, 13")
        e(f"s_add_u32 s{s0}, s{s0}, s{sKVB}")
        e(f"buffer_load_dwordx4 {vr(b, 4)}, v{vKA}, s[{SWS}:{SWS + 3}], s{s0} offen sc1")
        if with_v:
            e(f"s_mov_b64 exec, s[{sVMASK}:{sVMASK + 1}]")
            e(f"buffer_load_dwordx4 {vr(b + 4, 4)}, v{vVA}, s[{SWS}:{SWS + 3}], s{s0} offen offset:1024 sc1")
            e(f"buffer_load_dwordx4 {vr(b + 8, 4)}, v{vVA}, s[{SWS}:{SWS + 3}], s{s0} offen offset:1536 sc1")
            e("s_mov_b64 exec, -1")
        e("s_waitcnt vmcnt(0)")
    e(f"s_mov_b32 s{s5_}, 0")
    k.label("L_slow1")
    load(False)
    for q in range(4):
        e(f"v_mfma_f32_32x32x16_bf16 {vr(SB, 16)}, {vr(b, 4)}, {vr(QR + 4 * q, 4)}, 0")
        for r in range(0, 16, 2):
            e(f"v_max3_f32 v{MX + q}, v{MX + q}, v{SB + r}, v{SB + r + 1}")
        e("s_nop 1")
    e(f"s_add_u32 s{s5_}, s{s5_}, 1")
    e(f"s_cmp_lt_u32 s{s5_}, 16")
    e("s_cbranch_scc1 L_slow1")
    e(f"v_and_b32 v{SB + 1}, 31, v{vL}")
    for q in range(4):
        e(f"v_mov_b32 v{SB}, v{MX + q}")
        e(f"v_permlane32_swap_b32 v{SB}, v{MX + q}")
        e(f"v_max_f32 v{MX + q}, v{MX + q}, v{SB}")
        e(f"s_add_u32 s{s0}, s{sT}, {q + 1}")
        e(f"s_and_b32 s{s0}, s{s0}, 3")
        e(f"s_lshl2_add_u32 s{s0}, s{sF}, s{s0}")
        e(f"s_lshl_b32 s{s0}, s{s0}, 9")
        e(f"s_add_u32 s{s0}, s{s0}, {RED}")
        e(f"v_lshl_add_u32 v{MX + 4 + q}, v{SB + 1}, 4, s{s0}")
        e(f"s_lshl_b32 s{s0}, s{sT}, 2")
        e(f"v_add_u32 v{SB + 2}, s{s0}, v{MX + 4 + q}")
        e(f"ds_write_b32 v{SB + 2}, v{MX + q}")
    e("s_waitcnt lgkmcnt(0)")
    e("s_barrier")
    for q in range(4):
        e(f"ds_read_b128 {vr(SB + 4 * q, 4)}, v{MX + 4 + q}")
    e("s_waitcnt lgkmcnt(0)")
    for q in range(4):
        e(f"v_max3_f32 v{MX + q}, v{SB + 4 * q}, v{SB + 4 * q + 1}, v{SB + 4 * q + 2}")
        e(f"v_max_f32 v{MX + q}, v{MX + q}, v{SB + 4 * q + 3}")
    e("s_barrier")
    zero_o()
    e(f"s_mov_b32 s{s5_}, 0")
    k.label("L_slow2")
    load(True)
    for q in range(4):
        e(f"v_mfma_f32_32x32x16_bf16 {vr(SB, 16)}, {vr(b, 4)}, {vr(QR + 4 * q, 4)}, 0")
        for r in range(16):
            e(f"v_sub_f32 v{SB + r}, v{SB + r}, v{MX + q}")
        for r in range(16):
            e(f"v_exp_f32 v{SB + r}, v{SB + r}")
        e(f"v_smfmac_f32_32x32x32_bf16 {vr(OA + 16 * q, 16)}, {vr(b + 4, 4)}, {vr(SB, 8)}, v{vIDX}")
        e(f"v_smfmac_f32_32x32x32_bf16 {vr(OA + 16 * q, 16)}, {vr(b + 8, 4)}, {vr(SB + 8, 8)}, v{vIDX}")
    e("s_nop 15")
    e(f"s_add_u32 s{s5_}, s{s5_}, 1")
    e(f"s_cmp_lt_u32 s{s5_}, 16")
    e("s_cbranch_scc1 L_slow2")
    for q in range(3):
        red_send(q)
    e("s_waitcnt lgkmcnt(0)")
    e("s_barrier")
    e("s_branch L_reduce")


def finish():
    k.label("L_finish")
    if STOP is None:
        e(f"s_or_b32 s{s0}, s2, s{sWv}")
        e(f"s_cmp_lg_u32 s{s0}, 0")
        e("s_cbranch_scc1 L_nogen")
        e(f"v_mov_b32 v10, {WS_G}")
        flag_store(10, vTAG)
        k.label("L_nogen")
    if DEV:
        stamp("end")
        assert len(stamp_names) <= 30
        e(f"s_lshl3_add_u32 s{s0}, s2, s{sWv}")
        e(f"s_lshl_b32 s{s0}, s{s0}, 7")
        e(f"s_add_u32 s{s0}, s{s0}, {WS_TS}")
        e("s_mov_b64 exec, 1")
        e("v_mov_b32 v10, 0")
        for i in range(len(stamp_names)):
            e(f"v_mov_b32 v11, s{sSTAMP0 + i}")
            e(f"buffer_store_dword v11, v10, s[{SWS}:{SWS + 3}], s{s0} offen offset:{4 * i}")
        e(f"v_mov_b32 v11, s{sABORT}")
        e(f"buffer_store_dword v11, v10, s[{SWS}:{SWS + 3}], s{s0} offen offset:124")
    if DBG:
        sel = DBG.split(",")
        e(f"s_cmp_lg_u32 s{sT}, 0")
        e("s_cbranch_scc1 L_end")
        e(f"s_load_dwordx2 s[{ST}:{ST + 1}], s[0:1], 72")
        e(f"s_mov_b32 s{ST + 2}, 256")
        e(f"s_mov_b32 s{ST + 3}, 0x20000")
        e("s_mov_b64 exec, -1")
        e("v_mov_b32 v11, 0")
        e(f"s_not_b32 s{s0}, s{sSTAMP0}")
        e(f"v_writelane_b32 v11, s{s0}, 0")
        for i, n in enumerate(sel):
            e(f"v_writelane_b32 v11, s{sSTAMP0 + stamp_names.index(n)}, {i + 1}")
        e(f"v_lshlrev_b32 v10, 2, v{vL}")
        e("s_mov_b64 exec, 0xffff")
        e("s_waitcnt lgkmcnt(0)")
        e(f"buffer_atomic_umax v11, v10, s[{ST}:{ST + 3}], 0 offen")
    k.label("L_end")
    e("s_endpgm")


def main():
    entry()
    toks = [a_issue(0), a_issue(1), a_issue(2)]
    setup_rest()
    if DEV:
        for i in range(1, 30):
            e(f"s_mov_b32 s{sSTAMP0 + i}, 0")
    vm0 = k.vm
    e(f"s_bitcmp1_b32 s{sHP}, 0")
    e("s_cbranch_scc1 L_typeV")
    phase_a(0, toks, vm0)
    e("s_branch L_a_done")
    k.label("L_typeV")
    phase_a(1, toks, vm0)
    k.label("L_a_done")
    e("s_barrier")
    stamp("kv_stored")
    vm1 = k.vm
    e(f"s_cmp_lg_u32 s{sF}, 0")
    e("s_cbranch_scc1 L_f1")
    q_pass()
    attn_setup()
    k.wait(lg="all")
    e("s_barrier")
    e("s_branch L_attn")
    k.label("L_f1")
    k.vm = vm1
    e(f"s_cmp_eq_u32 s{sWv}, 7")
    e("s_cbranch_scc1 L_w7")
    pack_issue()
    k.wait(vm=vm1)
    flag_store(63, vTAG)
    attn_setup()
    e("s_barrier")
    pack_finish()
    e("s_branch L_attn")
    k.label("L_w7")
    k.wait(vm="all")
    flag_store(63, vTAG)
    e(f"v_mov_b32 v{vPF}, {OOB}")
    attn_setup()
    e("s_barrier")
    k.label("L_attn")
    stamp("q_done")
    q_read_and_zero()
    kt = {0: kv_issue(0), 1: kv_issue(1)}
    stamp("kv_seen")
    import phase_c
    phase_c.bind(globals())
    extras = phase_c.attn_extras()
    extras[(13, 1)] = red_setup
    attention(kt, extras)
    range_check()
    k.wait(lg="all")
    e("s_barrier")
    stamp("attn_done")
    k.label("L_reduce")
    otok = attn_reduce()
    if STOP == "attn":
        k.wait(vm="all")
        flag_store(vOFA, vTAG)
        stamp("o_flag")
    else:
        phase_c.run(otok)
    finish()
    for ln in k.tail:
        k.L.append(ln)
    kvpoll_routine()
    phase_c.routines()
    slow_path()
    k.label("L_code_end")
    e("s_endpgm")
    body, npad = pad_hazards(k.L, verbose="-v" in sys.argv)
    hdr = open("cdna_kernels/" + NAME + ".s.ref").read().split("\n")
    head = []
    for ln in hdr:
        if ln.startswith("; @launch"):
            head.append(f"; @launch grid=(256,1,1) block=(512,1,1) lds={LDS_SIZE}")
        else:
            head.append(ln)
        if ln.startswith(NAME + "_kernel:"):
            break
    txt = "\n".join(head) + "\n" + "\n".join(("" if l.endswith(":") else "    ") + l for l in body) + f"""
.section .rodata,"a"
.p2align 6
.amdhsa_kernel {NAME}_kernel
  .amdhsa_next_free_vgpr 256
  .amdhsa_next_free_sgpr 102
  .amdhsa_accum_offset 256
  .amdhsa_group_segment_fixed_size 0
  .amdhsa_kernarg_size 88
  .amdhsa_user_sgpr_count 2
  .amdhsa_user_sgpr_kernarg_segment_ptr 1
  .amdhsa_system_sgpr_workgroup_id_x 1
  .amdhsa_float_denorm_mode_32 3
.end_amdhsa_kernel
"""
    out = [a for a in sys.argv[1:] if not a.startswith("-")]
    path = out[0] if out else "k.s"
    open(path, "w").write(txt)
    open(path + ".stamps", "w").write("\n".join(stamp_names))
    print("wrote", path, "lines", len(body), "pads", npad)


if __name__ == "__main__":
    main()
```

```python
import sys
from asmlib import K, pad_hazards, vr, sr

NAME = "sequential_preLN__softmax_full_mha__dense_activation_gelu__prompt"
DEV = "--dev" in sys.argv
STOP = None
for a in sys.argv:
    if a.startswith("--stop="):
        STOP = a.split("=")[1]
FORCE_SLOW = "--force-slow" in sys.argv
SPIN = ([a.split("=")[1] for a in sys.argv if a.startswith("--spin=")] + [""])[0]
DBG = ([a.split("=")[1] for a in sys.argv if a.startswith("--dbg=")] + [""])[0]
FINE = ([a.split("=")[1] for a in sys.argv if a.startswith("--fine=")] + [""])[0]
CLK = "s_memtime" if "--cyc" in sys.argv else "s_memrealtime"

WS_G = 0x0
WS_FKV = 0x10000
WS_FO = 0x50000
WS_FH = 0x90000
WS_FG = 0xD0000
WS_FP = 0x150000
WS_TS = 0x160000
WS_KV = 0x200000
WS_O = 0x600000
WS_H = 0x800000
WS_GD = 0xA00000
WS_WO = 0x1000000
WS_W1 = 0x1080000
WS_W2 = 0x1200000
WS_SIZE = 0x1400000
OOB = 0x40000000

XRING = 0
WRING = 65536
QF = 98304
MISC = 106496
EXCH = 108544
WQ = 131072
PACK = 0
W1L = 0
AUG = 98304
RED = 108544
OST = 108544
C1X = 141312
LDS_SIZE = 163840

sONES = 3
SX, SW, SWS, SOUT, ST = 4, 8, 12, 16, 20
pWO, pW1, pB1, pW2, pB2 = 28, 32, 34, 36, 38
sTAG = 46
sWv, sT, sF, sXCD, sJ, sRB, sHP, sC = 48, 49, 50, 51, 52, 53, 54, 55
sXB, sWB = 56, 57
s0, s1, s2_, s3_, s4_, s5_, s6_, s7_ = 58, 59, 60, 61, 62, 63, 64, 65
sMASK, sABORT, sKVB, sVMASK = 66, 67, 68, 40
sRET = 42
sROT = 69
sSTMP = 24
sSTAMP0 = 70

k = K()
e = k.e
stamp_names = []


def stamp(name):
    if not DEV:
        return
    if name not in stamp_names:
        stamp_names.append(name)
    i = stamp_names.index(name)
    assert i < 30
    e(f"{CLK} s[{sSTMP}:{sSTMP + 1}]")
    e("s_waitcnt lgkmcnt(0)")
    e(f"s_mov_b32 s{sSTAMP0 + i}, s{sSTMP}")


def bf16_rne(dst, src):
    e(f"v_cvt_pk_bf16_f32 v{dst}, v{src}, v{src}")
    e(f"v_and_b32 v{dst}, 0xffff0000, v{dst}")


def ln_stats(vsum, vsq, vmean, vsd, vrstd, tmp):
    e(f"v_mul_f32 v{tmp}, 0x3b000000, v{vsum}")
    e(f"v_mul_f32 v{vsq}, 0x3b000000, v{vsq}")
    e(f"v_fma_f32 v{vsq}, -v{tmp}, v{tmp}, v{vsq}")
    e(f"v_max_f32 v{vsq}, 0, v{vsq}")
    bf16_rne(vmean, tmp)
    bf16_rne(vsq, vsq)
    e(f"v_add_f32 v{vsq}, 0x3727c5ac, v{vsq}")
    bf16_rne(vsq, vsq)
    e(f"v_sqrt_f32 v{vsq}, v{vsq}")
    bf16_rne(vsd, vsq)
    e(f"v_rcp_f32 v{vrstd}, v{vsd}")


def poll(vaddr, vtmp, cond, name):
    lp = k.newlabel("Lpoll_" + name)
    dn = k.newlabel("Lpolld_" + name)
    k.label(lp)
    e(f"buffer_load_dwordx2 v[{vtmp}:{vtmp + 1}], v{vaddr}, s[{SWS}:{SWS + 3}], 0 offen sc1")
    e(f"s_add_u32 s{sABORT}, s{sABORT}, 1")
    e(f"s_cmp_gt_u32 s{sABORT}, 0x20000")
    e(f"s_cbranch_scc1 {dn}")
    e("s_waitcnt vmcnt(0)")
    e(f"v_cmp_eq_u64 vcc, s[{sTAG}:{sTAG + 1}], v[{vtmp}:{vtmp + 1}]")
    cond()
    e(f"s_cbranch_scc0 {lp}")
    k.label(dn)
    e("s_waitcnt vmcnt(0)")


def flag_store(vaddr, vtag):
    e("s_mov_b64 exec, 1")
    tok = k.vmem(f"buffer_store_dwordx2 v[{vtag}:{vtag + 1}], v{vaddr}, s[{SWS}:{SWS + 3}], 0 offen sc1")
    e("s_mov_b64 exec, -1")
    return tok


vL = 1
vXD, vWD, vQD = 2, 3, 4
vXR, vWR, vQR = 5, 9, 13
vCS, vSUM, vSQ = 17, 18, 19
vMEAN, vRSTD = 20, 21
vTAG = 22
WF, ACC, QACC, XF = 64, 96, 112, 128


def entry():
    e("s_cmp_ge_u32 s2, 0x100")
    e("s_cbranch_scc1 L_end")
    e(f"s_load_dwordx2 s[{SX}:{SX + 1}], s[0:1], 0")
    e(f"s_load_dwordx2 s[{SW}:{SW + 1}], s[0:1], 8")
    e(f"s_load_dwordx2 s[{SWS}:{SWS + 1}], s[0:1], 80")
    if DEV:
        e(f"{CLK} s[{sSTMP + 2}:{sSTMP + 3}]")
    e("v_lshrrev_b32 v5, 6, v0")
    e("v_lshrrev_b32 v6, 3, v0")
    e(f"v_readfirstlane_b32 s{sWv}, v5")
    e("v_lshrrev_b32 v7, 4, v0")
    e("v_xor_b32 v8, v0, v7")
    e("v_and_b32 v8, 7, v8")
    e("v_lshlrev_b32 v8, 4, v8")
    e(f"v_lshl_add_u32 v{vXD}, v6, 10, v8")
    e("v_lshrrev_b32 v7, 2, v0")
    e("v_and_b32 v7, 4, v7")
    e("v_xor_b32 v7, v0, v7")
    e("v_and_b32 v7, 7, v7")
    e("v_lshlrev_b32 v7, 4, v7")
    e("v_mul_u32_u24 v6, 0xc00, v6")
    e(f"v_add_u32 v{vWD}, v6, v7")
    e(f"s_and_b32 s{sXCD}, s2, 7")
    e(f"s_lshr_b32 s{sJ}, s2, 3")
    e(f"s_and_b32 s{s0}, s{sJ}, 1")
    e(f"s_lshl1_add_u32 s{sRB}, s{sXCD}, s{s0}")
    e(f"s_lshr_b32 s{sHP}, s{sJ}, 1")
    e(f"s_lshl2_add_u32 s{sC}, s{s0}, s{sHP}")
    e(f"s_add_u32 s{sC}, s{sC}, s{sXCD}")
    e(f"s_and_b32 s{sC}, s{sC}, 7")
    e(f"s_mov_b32 s{sROT}, s{sC}")
    e(f"s_lshl_b32 s{sXB}, s{sRB}, 17")
    e(f"s_and_b32 s{s0}, s{sHP}, 1")
    e(f"s_lshr_b32 s{s1}, s{sHP}, 1")
    e(f"s_lshl3_add_u32 s{s0}, s{s0}, s{s1}")
    e(f"s_lshl_b32 s{s0}, s{s0}, 7")
    e(f"s_add_u32 s{sWB}, s{s0}, 0x400")
    e(f"s_mov_b32 s{SX + 2}, 0x200000")
    e(f"s_mov_b32 s{SX + 3}, 0x20000")
    e(f"s_mov_b32 s{SW + 2}, 0x180000")
    e(f"s_mov_b32 s{SW + 3}, 0x20000")
    e(f"s_lshl_b32 s{s7_}, s{sWv}, 10")
    e("s_waitcnt lgkmcnt(0)")


def a_issue(i):
    slot = i & 3
    e(f"s_lshl_b32 s{s0}, s{sC}, 7")
    e(f"s_add_u32 s{s0}, s{s0}, s{sXB}")
    e(f"s_add_u32 m0, s{s7_}, {XRING + slot * 16384}")
    e(f"s_mul_i32 s{s1}, s{sC}, 0x30000")
    k.vmem(f"buffer_load_dwordx4 v{vXD}, s[{SX}:{SX + 3}], s{s0} offen lds")
    e(f"s_add_u32 m0, s{s7_}, {WRING + slot * 8192}")
    e(f"s_add_u32 s{s1}, s{s1}, s{sWB}")
    k.vmem(f"buffer_load_dwordx4 v{vWD}, s[{SW}:{SW + 3}], s{s1} offen lds")
    e(f"s_add_u32 m0, s{s7_}, {XRING + slot * 16384 + 8192}")
    e(f"s_add_u32 s{s0}, s{s0}, 0x10000")
    tok = k.vmem(f"buffer_load_dwordx4 v{vXD}, s[{SX}:{SX + 3}], s{s0} offen lds")
    e(f"s_add_u32 s{sC}, s{sC}, 1")
    e(f"s_and_b32 s{sC}, s{sC}, 7")
    return tok


def setup_rest():
    e(f"s_load_dwordx2 s[{sTAG}:{sTAG + 1}], s[{SWS}:{SWS + 1}], {WS_G}")
    e(f"s_load_dwordx4 s[28:31], s[0:1], 16")
    e(f"s_load_dwordx8 s[32:39], s[0:1], 32")
    e(f"s_load_dwordx2 s[{SOUT}:{SOUT + 1}], s[0:1], 64")
    e(f"s_mov_b32 s{SWS + 2}, {WS_SIZE}")
    e(f"s_mov_b32 s{SWS + 3}, 0x20000")
    e(f"s_mov_b32 s{SOUT + 2}, 0x200000")
    e(f"s_mov_b32 s{SOUT + 3}, 0x20000")
    e(f"s_mov_b32 s{sONES}, 0x3f803f80")
    e(f"s_mov_b32 s{sABORT}, 0")
    e(f"s_and_b32 s{sT}, s{sWv}, 3")
    e(f"s_lshr_b32 s{sF}, s{sWv}, 2")
    e(f"v_and_b32 v{vL}, 63, v0")
    e(f"s_getpc_b64 s[{ST}:{ST + 1}]")
    k.label("L_pc")
    e(f"s_mov_b32 s{ST + 2}, L_code_end-L_pc")
    e(f"s_mov_b32 s{ST + 3}, 0x20000")
    e(f"s_lshl3_add_u32 s{s0}, s{sJ}, s{sWv}")
    e(f"s_lshl_b32 s{s0}, s{s0}, 8")
    e(f"v_lshlrev_b32 v24, 2, v{vL}")
    k.vmem(f"buffer_load_dword v25, v24, s[{ST}:{ST + 3}], s{s0} offen")
    e(f"s_lshl_b32 s{s0}, s{sF}, 1")
    e(f"s_xor_b32 s{s0}, s{s0}, s{sT}")
    e(f"v_and_b32 v26, 31, v{vL}")
    e(f"v_lshrrev_b32 v27, 5, v{vL}")
    e("v_bfe_u32 v28, v26, 1, 3")
    e("v_xor_b32 v28, v28, v27")
    e(f"s_lshl_b32 s{s1}, s{s0}, 1")
    e(f"v_xor_b32 v28, s{s1}, v28")
    e("v_lshlrev_b32 v28, 4, v28")
    e(f"s_lshl_b32 s{s1}, s{sT}, 12")
    e(f"v_lshl_add_u32 v29, v26, 7, s{s1}")
    e(f"v_add_u32 v{vXR}, v28, v29")
    for ks in range(1, 4):
        e(f"v_xor_b32 v{vXR + ks}, {ks * 32}, v{vXR}")
    e(f"v_bfe_u32 v28, v{vL}, 2, 2")
    e("v_lshl_add_u32 v28, v27, 3, v28")
    e(f"v_and_b32 v29, 3, v{vL}")
    e("v_lshlrev_b32 v29, 3, v29")
    e(f"v_bfe_u32 v30, v{vL}, 4, 1")
    e("v_lshl_add_u32 v29, v30, 5, v29")
    e(f"v_bfe_u32 v30, v{vL}, 3, 1")
    e(f"v_xor_b32 v30, s{sF}, v30")
    e("v_lshl_add_u32 v30, v30, 6, v29")
    e("v_lshl_add_u32 v30, v28, 7, v30")
    e(f"s_lshl_b32 s{s1}, s{s0}, 11")
    e(f"s_add_u32 s{s1}, s{s1}, {WRING}")
    e(f"v_add_u32 v{vWR}, s{s1}, v30")
    for ks in range(1, 4):
        e(f"v_xor_b32 v{vWR + ks}, {ks * 2048}, v{vWR}")
    e("v_lshl_add_u32 v30, v28, 6, v29")
    e(f"s_lshl_b32 s{s1}, s{s0}, 10")
    e(f"s_add_u32 s{s1}, s{s1}, {WQ}")
    e(f"v_add_u32 v{vQR}, s{s1}, v30")
    for ks in range(1, 4):
        e(f"v_xor_b32 v{vQR + ks}, {ks * 1024}, v{vQR}")
    e(f"v_lshrrev_b32 v28, 2, v{vL}")
    e("v_mul_u32_u24 v28, 0xc00, v28")
    e(f"v_and_b32 v29, 3, v{vL}")
    e(f"v_lshl_add_u32 v{vQD}, v29, 4, v28")
    e(f"v_mov_b32 v{vCS}, 0")
    e(f"v_mov_b32 v{vSUM}, 0")
    e(f"v_mov_b32 v{vSQ}, 0")
    e(f"v_mov_b32 v28, {MISC}")
    e(f"ds_write_b32 v28, v{vCS}")
    e("s_waitcnt lgkmcnt(0)")
    e(f"s_mul_i32 s{sTAG}, s{sTAG}, 0x9e3779b1")
    e(f"s_add_u32 s{sTAG}, s{sTAG}, 0x7f4a7c15")
    e(f"s_add_u32 s{sTAG + 1}, s{sTAG + 1}, 0x632be5ab")
    e(f"v_mov_b32 v{vTAG}, s{sTAG}")
    e(f"v_mov_b32 v{vTAG + 1}, s{sTAG + 1}")
    if DEV:
        stamp_names.append("start")
        e(f"s_mov_b32 s{sSTAMP0}, s{sSTMP + 2}")


def wq_issue():
    e(f"s_add_u32 s{s0}, s{sROT}, s{sWv}")
    e(f"s_and_b32 s{s0}, s{s0}, 7")
    e(f"s_mul_i32 s{s0}, s{s0}, 0x30000")
    e(f"s_lshl_b32 s{s1}, s{sHP}, 6")
    e(f"s_add_u32 s{s0}, s{s0}, s{s1}")
    e(f"s_lshl_b32 s{s1}, s{sWv}, 12")
    tok = None
    for q in range(4):
        e(f"s_add_u32 m0, s{s1}, {WQ + q * 1024}")
        if q:
            e(f"s_add_u32 s{s0}, s{s0}, 0xc000")
        tok = k.vmem(f"buffer_load_dwordx4 v{vQD}, s[{SW}:{SW + 3}], s{s0} offen lds")
    return tok


def phase_a(typ, toks, merge_vm):
    toks = list(toks)
    k.vm = merge_vm

    def reads(i):
        slot = i & 3
        for ks in range(4):
            k.lds(f"ds_read_b128 {vr(XF + 16 * i + 4 * ks, 4)}, v{vXR + ks} offset:{slot * 16384}")
            w = WF + 16 * (i & 1) + 4 * ks
            k.lds(f"ds_read_b64_tr_b16 {vr(w, 2)}, v{vWR + ks} offset:{slot * 8192}")
            k.lds(f"ds_read_b64_tr_b16 {vr(w + 2, 2)}, v{vWR + ks} offset:{slot * 8192 + 512}")

    def dots(i):
        d = []
        for r in range(8):
            x = XF + 16 * i + r
            d.append(f"v_dot2c_f32_bf16 v{vSUM}, s{sONES}, v{x}")
            d.append(f"v_dot2c_f32_bf16 v{vSQ}, v{x}, v{x}")
            if r & 1:
                d.append(f"v_dot2c_f32_bf16 v{vCS}, s{sONES}, v{WF + 16 * (i & 1) + (r >> 1)}")
        return d

    def mf(i, ks):
        x = vr(XF + 16 * i + 4 * ks, 4)
        w = vr(WF + 16 * (i & 1) + 4 * ks, 4)
        c = "0" if (i == 0 and ks == 0) else vr(ACC, 16)
        a, b = (w, x) if typ == 0 else (x, w)
        return f"v_mfma_f32_32x32x16_bf16 {vr(ACC, 16)}, {a}, {b}, {c}"

    wq_tok = None
    for i in range(8):
        if FINE == "a":
            stamp(f"a{i}_pre")
        k.wait(vm=toks[i], lg="all")
        e("s_barrier")
        if FINE == "a":
            stamp(f"a{i}_bar")
        if i + 3 < 8:
            toks.append(a_issue(i + 3))
        elif i == 5:
            wq_tok = wq_issue()
        reads(i)
        if i > 0:
            d = dots(i - 1)
            for ks in range(4):
                e(mf(i - 1, ks))
                for x in d[5 * ks:5 * ks + 5]:
                    e(x)
    e(f"v_and_b32 v26, 31, v{vL}")
    e(f"v_lshrrev_b32 v27, 5, v{vL}")
    e(f"s_lshl_b32 s{s0}, s{sT}, 10")
    e(f"s_add_u32 s{s0}, s{s0}, {EXCH}")
    e(f"v_lshl_add_u32 v28, v26, 5, s{s0}")
    e(f"s_lshl_b32 s{s0}, s{sF}, 4")
    e(f"v_lshl_add_u32 v29, v27, 3, s{s0}")
    e("v_add_u32 v29, v29, v28")
    e(f"s_lshl_b32 s{s0}, s{sF}, 10")
    e(f"s_add_u32 s{s0}, s{s0}, {EXCH + 4096}")
    e(f"v_lshl_add_u32 v30, v26, 5, s{s0}")
    e(f"s_lshl_b32 s{s0}, s{sT}, 3")
    e(f"v_lshl_add_u32 v31, v27, 2, s{s0}")
    e("v_add_u32 v31, v31, v30")
    e(f"s_lshl_b32 s{s0}, s{sWv}, 8")
    e(f"s_add_u32 s{s0}, s{s0}, {EXCH + 6144}")
    e(f"v_lshl_add_u32 v60, v26, 2, s{s0}")
    e(f"v_lshl_add_u32 v61, v27, 4, s{s0}")
    k.wait(lg="all")
    e(mf(7, 0))
    for x in dots(7):
        e(x)
    e(mf(7, 1))
    e(mf(7, 2))
    k.lds(f"ds_write_b64 v29, v[{vSUM}:{vSQ}]")
    k.lds(f"ds_write_b32 v31, v{vCS}")
    e(mf(7, 3))
    k.wait(lg="all")
    e("s_barrier")
    stamp("a_loop")
    k.lds("ds_read_b128 v[32:35], v28")
    t1 = k.lds("ds_read_b128 v[36:39], v28 offset:16")
    k.lds("ds_read_b128 v[40:43], v30")
    t2 = k.lds("ds_read_b128 v[44:47], v30 offset:16")
    e(f"s_lshr_b32 s{s0}, s{sHP}, 1")
    e(f"s_lshl1_add_u32 s{s0}, s{s0}, s{sF}")
    e(f"s_lshl2_add_u32 s{s1}, s{sRB}, s{sT}")
    e(f"s_lshl_b32 s{s2_}, s{s0}, 18")
    e(f"s_lshl_b32 s{s1}, s{s1}, 11")
    e(f"s_add_u32 s{s2_}, s{s2_}, s{s1}")
    e(f"s_add_u32 s{s2_}, s{s2_}, {WS_KV}")
    e(f"s_add_u32 s{s3_}, s{s2_}, 0x20000")
    e(f"s_lshl2_add_u32 s{s0}, s{s0}, s{sT}")
    e(f"s_lshl_b32 s{s0}, s{s0}, 5")
    e(f"s_add_u32 s{s0}, s{s0}, s{sRB}")
    e(f"s_lshl_b32 s{s0}, s{s0}, 7")
    e(f"s_add_u32 s{s0}, s{s0}, {WS_FKV + typ * 16 * 128}")
    e(f"v_mov_b32 v63, s{s0}")
    if typ == 0:
        e(f"v_lshrrev_b32 v48, 1, v{vL}")
        e(f"v_xor_b32 v48, v48, v{vL}")
        e("v_and_b32 v48, 4, v48")
        e("v_mul_u32_u24 v48, 3, v48")
        e(f"v_xor_b32 v48, v48, v{vL}")
        e("v_lshlrev_b32 v62, 4, v48")
    else:
        e(f"v_and_b32 v48, 15, v{vL}")
        e("v_lshl_add_u32 v48, v27, 4, v48")
        e("v_lshlrev_b32 v48, 4, v48")
        e(f"v_bfe_u32 v49, v{vL}, 4, 1")
        e("v_lshl_add_u32 v62, v49, 17, v48")
    k.wait(lg=t1)
    e("v_add_f32 v32, v32, v34")
    e("v_add_f32 v33, v33, v35")
    e("v_add_f32 v36, v36, v38")
    e("v_add_f32 v37, v37, v39")
    e("v_add_f32 v32, v32, v36")
    e("v_add_f32 v33, v33, v37")
    if typ == 0:
        k.wait(lg=t2)
        for a, b in ((40, 41), (42, 43), (44, 45), (46, 47), (40, 42), (44, 46), (40, 44)):
            e(f"v_add_f32 v{a}, v{a}, v{b}")
        k.lds("ds_write_b32 v60, v40")
        for j in range(4):
            k.lds(f"ds_read_b128 {vr(44 + 4 * j, 4)}, v61 offset:{32 * j}")
        ln_stats(32, 33, vMEAN, 34, vRSTD, 35)
        k.wait(lg="all")
        for r in range(16):
            e(f"v_fma_f32 v{44 + r}, -v{vMEAN}, v{44 + r}, v{ACC + r}")
        for r in range(16):
            e(f"v_mul_f32 v{44 + r}, v{vRSTD}, v{44 + r}")
        src = 44
    else:
        ln_stats(32, 33, vMEAN, 34, vRSTD, 35)
        k.lds(f"ds_write2_b32 v60, v{vMEAN}, v{vRSTD} offset0:0 offset1:32")
        for j in range(4):
            k.lds(f"ds_read_b128 {vr(WF + 4 * j, 4)}, v61 offset:{32 * j}")
        for j in range(4):
            k.lds(f"ds_read_b128 {vr(WF + 16 + 4 * j, 4)}, v61 offset:{128 + 32 * j}")
        k.wait(lg=t2)
        for a, b in ((40, 41), (42, 43), (44, 45), (46, 47), (40, 42), (44, 46), (40, 44)):
            e(f"v_add_f32 v{a}, v{a}, v{b}")
        k.wait(lg=k.lg - 4)
        for r in range(16):
            e(f"v_fma_f32 v{44 + r}, -v40, v{WF + r}, v{ACC + r}")
        k.wait(lg="all")
        for r in range(16):
            e(f"v_mul_f32 v{44 + r}, v{WF + 16 + r}, v{44 + r}")
        src = 44
    for r in range(8):
        e(f"v_cvt_pk_bf16_f32 v{ACC + r}, v{src + 2 * r}, v{src + 2 * r + 1}")
        if r == 3:
            off = "" if typ == 0 else " offset:1024"
            k.vmem(f"buffer_store_dwordx4 {vr(ACC, 4)}, v62, s[{SWS}:{SWS + 3}], s{s2_} offen{off} sc1")
    if typ == 0:
        k.vmem(f"buffer_store_dwordx4 {vr(ACC + 4, 4)}, v62, s[{SWS}:{SWS + 3}], s{s3_} offen sc1")
    else:
        k.vmem(f"buffer_store_dwordx4 {vr(ACC + 4, 4)}, v62, s[{SWS}:{SWS + 3}], s{s2_} offen offset:1536 sc1")
    k.wait(vm=wq_tok)


KVB, QR, SB, OA, WOR = 24, 96, 64, 128, 192
vIDX, vKA, vVA, vFA, vPF = 2, 3, 4, 5, 6
vPT = 8
vXRES = 16
NBUF = 3


def attn_setup():
    e(f"v_mov_b32 v{vIDX}, 0xdddd")
    e(f"v_lshlrev_b32 v{vKA}, 4, v{vL}")
    e(f"v_and_b32 v10, 15, v{vL}")
    e(f"v_lshrrev_b32 v11, 5, v{vL}")
    e("v_lshl_add_u32 v11, v11, 4, v10")
    e(f"v_lshlrev_b32 v{vVA}, 4, v11")
    e(f"v_add_u32 v10, s{sRB}, v10")
    e("v_and_b32 v10, 15, v10")
    e(f"v_and_b32 v11, 16, v{vL}")
    e("v_add_u32 v10, v10, v11")
    e(f"s_lshl2_add_u32 s{s0}, s{sHP}, s{sT}")
    e(f"s_lshl_b32 s{s0}, s{s0}, 12")
    e(f"s_add_u32 s{s0}, s{s0}, {WS_FKV}")
    e(f"v_lshl_add_u32 v{vFA}, v10, 7, s{s0}")
    e(f"s_lshl1_add_u32 s{s0}, s{sHP}, s{sF}")
    e(f"s_lshl_b32 s{s0}, s{s0}, 17")
    e(f"s_lshl_b32 s{s1}, s{sT}, 11")
    e(f"s_add_u32 s{s0}, s{s0}, s{s1}")
    e(f"s_add_u32 s{sKVB}, s{s0}, {WS_KV}")
    e(f"s_mov_b32 s{sVMASK}, 0xffff")
    e(f"s_mov_b32 s{sVMASK + 1}, 0xffff")
    e(f"s_mov_b32 s{sMASK}, 0")
    e(f"v_and_b32 v10, 27, v{vL}")
    e("v_cmp_eq_u32 vcc, 16, v10")
    e(f"v_mov_b32 v11, s{sONES}")
    e("v_cndmask_b32 v10, 0, v11, vcc")
    for b in range(NBUF):
        for r in range(4, 12):
            e(f"v_mov_b32 v{KVB + 12 * b + r}, v10")


def kv_issue(s, check=True):
    b = KVB + 12 * (s % NBUF)
    if check:
        stub = k.newlabel("Lkvs")
        ret = k.newlabel("Lkvr")
        e(f"s_bitcmp1_b32 s{sMASK}, {s}")
        e(f"s_cbranch_scc0 {stub}")
        k.label(ret)
        k.tail += [f"{stub}:", f"s_mov_b32 s{s6_}, {s}", f"s_call_b64 s[{sRET}:{sRET + 1}], L_kvpoll", f"s_branch {ret}"]
    e(f"s_add_u32 s{s0}, s{sRB}, {s}")
    e(f"s_and_b32 s{s0}, s{s0}, 15")
    e(f"s_lshl_b32 s{s0}, s{s0}, 13")
    e(f"s_add_u32 s{s0}, s{s0}, s{sKVB}")
    k.vmem(f"buffer_load_dwordx4 {vr(b, 4)}, v{vKA}, s[{SWS}:{SWS + 3}], s{s0} offen sc1")
    e(f"s_mov_b64 exec, s[{sVMASK}:{sVMASK + 1}]")
    k.vmem(f"buffer_load_dwordx4 {vr(b + 4, 4)}, v{vVA}, s[{SWS}:{SWS + 3}], s{s0} offen offset:1024 sc1")
    tok = k.vmem(f"buffer_load_dwordx4 {vr(b + 8, 4)}, v{vVA}, s[{SWS}:{SWS + 3}], s{s0} offen offset:1536 sc1")
    e("s_mov_b64 exec, -1")
    return tok


def kvpoll_routine():
    k.label("L_kvpoll")

    def cond():
        e(f"s_lshr_b32 s{sMASK}, vcc_lo, 16")
        e(f"s_and_b32 s{sMASK}, s{sMASK}, vcc_lo")
        e(f"s_bitcmp1_b32 s{sMASK}, s{s6_}")
    poll(vFA, vPT, cond, "kv")
    e(f"s_setpc_b64 s[{sRET}:{sRET + 1}]")


def q_pass():
    LA = 6
    toks = {}

    def rd(n):
        i, ks = n >> 2, n & 3
        w = WF + 4 * (n & 7)
        k.lds(f"ds_read_b64_tr_b16 {vr(w, 2)}, v{vQR + ks} offset:{i * 4096}")
        toks[n] = k.lds(f"ds_read_b64_tr_b16 {vr(w + 2, 2)}, v{vQR + ks} offset:{i * 4096 + 256}")
    kv_tok = k.vm
    e(f"v_mov_b32 v{vCS}, 0")
    for n in range(LA):
        rd(n)
    for n in range(32):
        k.wait(lg=toks[n])
        w = WF + 4 * (n & 7)
        c = "0" if n == 0 else vr(QACC, 16)
        e(f"v_mfma_f32_32x32x16_bf16 {vr(QACC, 16)}, {vr(w, 4)}, {vr(XF + 4 * n, 4)}, {c}")
        if n + LA < 32:
            rd(n + LA)
        for r in range(4):
            e(f"v_dot2c_f32_bf16 v{vCS}, s{sONES}, v{w + r}")
        if n == 20:
            k.wait(vm=kv_tok)
            flag_store(63, vTAG)
    e(f"v_mov_b32 v40, v{vCS}")
    e(f"v_permlane32_swap_b32 v40, v{vCS}")
    e(f"v_add_f32 v40, v40, v{vCS}")
    k.lds("ds_write_b32 v60, v40")
    for j in range(4):
        k.lds(f"ds_read_b128 {vr(WF + 4 * j, 4)}, v61 offset:{32 * j}")
    e(f"v_mul_f32 v{vRSTD}, 0x3eb8aa3b, v{vRSTD}")
    e(f"s_lshl_b32 s{s0}, s{sT}, 10")
    e(f"s_add_u32 s{s0}, s{s0}, {QF}")
    e(f"v_lshl_add_u32 v60, v{vL}, 4, s{s0}")
    k.wait(lg="all")
    for r in range(16):
        e(f"v_fma_f32 v{WF + r}, -v{vMEAN}, v{WF + r}, v{QACC + r}")
    for r in range(16):
        e(f"v_mul_f32 v{WF + r}, v{vRSTD}, v{WF + r}")
    for r in range(8):
        e(f"v_cvt_pk_bf16_f32 v{QACC + r}, v{WF + 2 * r}, v{WF + 2 * r + 1}")
        if r == 3:
            k.lds(f"ds_write_b128 v60, {vr(QACC, 4)}")
    k.lds(f"ds_write_b128 v60, {vr(QACC + 4, 4)} offset:4096")
    e(f"v_mov_b32 v{vPF}, {OOB}")


def pack_issue():
    def sel(dst, a, b, c):
        e(f"s_cmp_eq_u32 s{sWv}, 5")
        e(f"s_cselect_b32 s{dst}, {b}, {a}")
        if c != a:
            e(f"s_cmp_eq_u32 s{sWv}, 6")
            e(f"s_cselect_b32 s{dst}, {c}, s{dst}")
    sel(ST, f"s{pWO}", f"s{pW1}", f"s{pW2}")
    sel(ST + 1, f"s{pWO + 1}", f"s{pW1 + 1}", f"s{pW2 + 1}")
    e(f"s_mov_b32 s{s0}, 0x158000")
    e(f"s_cmp_eq_u32 s{sWv}, 4")
    e(f"s_cselect_b32 s{ST + 2}, 0x80000, s{s0}")
    e(f"s_mov_b32 s{ST + 3}, 0x20000")
    e(f"s_movk_i32 s{s0}, 0x400")
    e(f"s_cmp_eq_u32 s{sWv}, 5")
    e(f"s_cselect_b32 s{s1}, 0xac0, s{s0}")
    e(f"s_movk_i32 s{s0}, 0x100")
    sel(s2_, f"s{s0}", "704", "688")
    e(f"s_mov_b32 s{s0}, {WS_WO}")
    sel(s3_, f"s{s0}", WS_W1, WS_W2)
    e(f"v_lshrrev_b32 v24, 3, v{vL}")
    e(f"v_mul_u32_u24 v24, s{s1}, v24")
    e(f"v_lshrrev_b32 v25, 2, v{vL}")
    e("v_and_b32 v25, 4, v25")
    e(f"v_xor_b32 v25, v25, v{vL}")
    e("v_and_b32 v25, 7, v25")
    e("v_lshl_add_u32 v24, v25, 4, v24")
    e(f"s_mul_i32 s{s7_}, s{sT}, 6144")
    for n in range(3):
        e(f"s_add_u32 s{s0}, s2, {256 * n}")
        e(f"s_and_b32 s{s4_}, s{s0}, 31")
        e(f"s_lshr_b32 s{s5_}, s{s0}, 5")
        e(f"s_lshr_b32 s{s6_}, s{s0}, 3")
        e(f"s_and_b32 s{sMASK}, s{s0}, 7")
        e(f"s_cmp_eq_u32 s{sWv}, 6")
        e(f"s_cselect_b32 s{s4_}, s{s6_}, s{s4_}")
        e(f"s_cselect_b32 s{s5_}, s{sMASK}, s{s5_}")
        e(f"s_cselect_b32 s{s6_}, 86, 32")
        e(f"s_mul_i32 s{sMASK}, s{s5_}, s{s6_}")
        e(f"s_lshl1_add_u32 s{sMASK}, s{sMASK}, s{s4_}")
        e(f"s_lshl_b32 s{sMASK}, s{sMASK}, 10")
        e(f"s_add_u32 s{sMASK}, s{sMASK}, s{s3_}")
        e(f"s_cmp_lt_u32 s{s0}, s{s2_}")
        e(f"s_cselect_b32 s{sMASK}, s{sMASK}, {OOB}")
        e(f"s_cselect_b32 s{s0}, 0, {OOB}")
        e(f"v_lshl_add_u32 v{112 + 2 * n}, v{vL}, 4, s{sMASK}")
        e(f"s_lshl_b32 s{s6_}, s{s6_}, 10")
        e(f"v_add_u32 v{113 + 2 * n}, s{s6_}, v{112 + 2 * n}")
        e(f"s_mul_i32 s{s4_}, s{s4_}, s{s1}")
        e(f"s_lshl_b32 s{s4_}, s{s4_}, 4")
        e(f"s_lshl_b32 s{s5_}, s{s5_}, 7")
        e(f"s_add_u32 s{s4_}, s{s4_}, s{s5_}")
        e(f"s_add_u32 s{s4_}, s{s4_}, s{s0}")
        e(f"v_add_u32 v25, s{s4_}, v24")
        e(f"s_lshl_b32 s{s5_}, s{s1}, 3")
        e(f"s_add_u32 m0, s{s7_}, {PACK + n * 2048}")
        k.vmem(f"buffer_load_dwordx4 v25, s[{ST}:{ST + 3}], 0 offen lds")
        e(f"v_add_u32 v25, s{s5_}, v25")
        e(f"s_add_u32 m0, s{s7_}, {PACK + n * 2048 + 1024}")
        k.vmem(f"buffer_load_dwordx4 v25, s[{ST}:{ST + 3}], 0 offen lds")
    e(f"v_bfe_u32 v24, v{vL}, 2, 2")
    e(f"v_lshrrev_b32 v25, 5, v{vL}")
    e("v_lshl_add_u32 v24, v25, 2, v24")
    e(f"v_and_b32 v25, 3, v{vL}")
    e("v_lshlrev_b32 v25, 3, v25")
    e(f"v_bfe_u32 v26, v{vL}, 4, 1")
    e("v_lshl_add_u32 v25, v26, 5, v25")
    e(f"v_bfe_u32 v26, v{vL}, 3, 1")
    e("v_lshl_add_u32 v25, v26, 6, v25")
    e("v_lshl_add_u32 v25, v24, 7, v25")
    e(f"v_add_u32 v118, s{s7_}, v25")
    e("v_xor_b32 v119, 64, v118")
    e(f"s_lshl_b32 s{s0}, s{sT}, 11")
    e(f"s_lshl3_add_u32 s{s0}, s2, s{s0}")
    e(f"s_add_u32 s{s0}, s{s0}, {WS_FP}")
    e(f"v_mov_b32 v{vPF}, s{s0}")


def pack_finish():
    k.wait(vm="all")
    for n in range(3):
        for ff in range(2):
            r = WOR + 8 * n + 4 * ff
            k.lds(f"ds_read_b64_tr_b16 {vr(r, 2)}, v{118 + ff} offset:{PACK + n * 2048}")
            k.lds(f"ds_read_b64_tr_b16 {vr(r + 2, 2)}, v{118 + ff} offset:{PACK + n * 2048 + 1024}")
    k.wait(lg="all")
    for n in range(3):
        for ff in range(2):
            r = WOR + 8 * n + 4 * ff
            k.vmem(f"buffer_store_dwordx4 {vr(r, 4)}, v{112 + 2 * n + ff}, s[{SWS}:{SWS + 3}], 0 offen sc1")


def q_read_and_zero():
    e(f"s_lshl_b32 s{s1}, s{sF}, 12")
    e(f"s_add_u32 s{s1}, s{s1}, {QF}")
    for i in range(4):
        e(f"s_add_u32 s{s0}, s{sT}, {i + 1}")
        e(f"s_and_b32 s{s0}, s{s0}, 3")
        e(f"s_lshl_b32 s{s0}, s{s0}, 10")
        e(f"s_add_u32 s{s0}, s{s0}, s{s1}")
        e(f"v_add_u32 v10, s{s0}, v{vKA}")
        k.lds(f"ds_read_b128 {vr(QR + 4 * i, 4)}, v10")
    zero_o()


def zero_o():
    for r in range(4):
        e(f"v_mov_b32 v{SB + r}, 0")
    for q in range(4):
        e(f"v_mfma_f32_32x32x16_bf16 {vr(OA + 16 * q, 16)}, {vr(SB, 4)}, {vr(SB, 4)}, 0")


vRW, vRR, vOFA = 10, 13, 14


def red_setup():
    e(f"s_mul_i32 s{s1}, s{sF}, {12 * 2304}")
    e(f"s_add_u32 s{s1}, s{s1}, {RED}")
    for i in range(3):
        e(f"s_add_u32 s{s0}, s{sT}, {i + 1}")
        e(f"s_and_b32 s{s0}, s{s0}, 3")
        e(f"s_mul_i32 s{s0}, s{s0}, {3 * 2304}")
        e(f"s_add_u32 s{s0}, s{s0}, s{s1}")
        e(f"s_add_u32 s{s0}, s{s0}, {i * 2304}")
        e(f"v_add_u32 v{vRW + i}, s{s0}, v{vKA}")
    e(f"s_mul_i32 s{s0}, s{sT}, {3 * 2304}")
    e(f"s_add_u32 s{s0}, s{s0}, s{s1}")
    e(f"v_add_u32 v{vRR}, s{s0}, v{vKA}")
    e(f"v_mul_u32_u24 v15, 12, v{vL}")


def red_send(q):
    o = OA + 16 * q
    k.lds(f"ds_write_b128 v{vRW + q}, {vr(o, 4)}")
    k.lds(f"ds_write_b128 v{vRW + q}, {vr(o + 4, 4)} offset:1024")
    e(f"v_sub_u32 v{o + 9}, v{vRW + q}, v15")
    k.lds(f"ds_write_b32 v{o + 9}, v{o + 8} offset:2048")


def attention(toks, extras):
    toks = dict(toks)

    def qk(ti):
        s, q = ti >> 2, ti & 3
        b = KVB + 12 * (s % NBUF)
        d = SB + 16 * (ti & 1)
        return f"v_mfma_f32_32x32x16_bf16 {vr(d, 16)}, {vr(b, 4)}, {vr(QR + 4 * q, 4)}, 0"

    def pv(ti, half):
        s, q = ti >> 2, ti & 3
        b = KVB + 12 * (s % NBUF) + 4 + 4 * half
        p = SB + 16 * (ti & 1) + 8 * half
        return f"v_smfmac_f32_32x32x32_bf16 {vr(OA + 16 * q, 16)}, {vr(b, 4)}, {vr(p, 8)}, v{vIDX}"

    e("s_setprio 3")
    k.wait(vm=toks[0], lg="all")
    flag_store(vPF, vTAG)
    e(qk(0))
    for ti in range(64):
        s, q = ti >> 2, ti & 3
        d = SB + 16 * (ti & 1)
        E = lambda j: e(f"v_exp_f32 v{d + j}, v{d + j}")
        if ti == 32:
            e("s_setprio 2")
        if ti == 58:
            e("s_setprio 1")
        if ti == 63:
            e("s_setprio 0")
        E(0); E(1)
        if ti > 0:
            e(pv(ti - 1, 1))
        E(2)
        if q == 0 and s + 2 < 16:
            toks[s + 2] = kv_issue(s + 2)
        if (s, q) in extras:
            extras[(s, q)]()
        E(3); E(4)
        if ti + 1 < 64:
            if q == 3:
                k.wait(vm=toks[s + 1])
            e(qk(ti + 1))
        for j in range(5, 10):
            E(j)
        e(pv(ti, 0))
        for j in range(10, 16):
            E(j)
        if s == 15 and q >= 1:
            red_send(q - 1)
    e(pv(63, 1))


def range_check():
    o = [OA + 16 * q + 8 for q in range(4)]
    e(f"v_min3_f32 v{SB + 1}, v{o[0]}, v{o[1]}, v{o[2]}")
    e(f"v_add_f32 v{SB + 2}, v{o[0]}, v{o[1]}")
    e(f"v_add_f32 v{SB + 2}, v{SB + 2}, v{o[2]}")
    e(f"v_add_f32 v{SB + 2}, v{SB + 2}, v{o[3]}")
    e(f"v_min_f32 v{SB + 1}, v{SB + 1}, v{o[3]}")
    e(f"v_cmp_nge_f32 vcc, 0x5d800000, v{SB + 2}")
    e(f"s_mov_b64 s[{s0}:{s0 + 1}], vcc")
    e(f"v_cmp_nle_f32 vcc, 0x21800000, v{SB + 1}")
    e(f"s_or_b64 vcc, vcc, s[{s0}:{s0 + 1}]")
    if FORCE_SLOW:
        e("s_mov_b64 vcc, -1")
    e(f"v_mov_b32 v{SB + 3}, {MISC}")
    e(f"v_mov_b32 v{SB + 4}, 1")
    e("s_mov_b64 exec, vcc")
    k.lds(f"ds_write_b32 v{SB + 3}, v{SB + 4}")
    e("s_mov_b64 exec, -1")


def attn_reduce():
    o = OA + 48
    e(f"v_mov_b32 v{SB + 3}, {MISC}")
    e(f"v_sub_u32 v{SB + 5}, v{vRR}, v15")
    k.lds(f"ds_read_b32 v{SB + 4}, v{SB + 3}")
    tl = []
    for i in range(3):
        tl.append(k.lds(f"ds_read_b32 v{SB + 6 + i}, v{SB + 5} offset:{i * 2304 + 2048}"))
    td = []
    for i in range(3):
        k.lds(f"ds_read_b128 {vr(OA + 8 * i, 4)}, v{vRR} offset:{i * 2304}")
        td.append(k.lds(f"ds_read_b128 {vr(OA + 8 * i + 4, 4)}, v{vRR} offset:{i * 2304 + 1024}"))
    e(f"s_lshl2_add_u32 s{s0}, s{sRB}, s{sT}")
    e(f"s_lshl_b32 s{s0}, s{s0}, 5")
    e(f"s_lshl1_add_u32 s{s1}, s{sHP}, s{sF}")
    e(f"s_add_u32 s{s0}, s{s0}, s{s1}")
    e(f"s_lshl_b32 s{s1}, s{s0}, 7")
    e(f"s_add_u32 s{s1}, s{s1}, {WS_FO}")
    e(f"v_mov_b32 v{vOFA}, s{s1}")
    e(f"s_lshl_b32 s{s0}, s{s0}, 10")
    e(f"s_add_u32 s{s0}, s{s0}, {WS_O}")
    k.wait(lg=tl[2])
    e(f"v_cmp_ne_u32 vcc, 0, v{SB + 4}")
    e("s_cbranch_vccnz L_slow")
    e(f"v_add_f32 v{SB + 6}, v{SB + 6}, v{SB + 7}")
    e(f"v_add_f32 v{SB + 8}, v{SB + 8}, v{o + 8}")
    e(f"v_add_f32 v{SB + 6}, v{SB + 6}, v{SB + 8}")
    e(f"v_rcp_f32 v{SB + 6}, v{SB + 6}")
    for i in range(3):
        k.wait(lg=td[i])
        for r in range(0, 8, 2):
            e(f"v_pk_add_f32 {vr(o + r, 2)}, {vr(o + r, 2)}, {vr(OA + 8 * i + r, 2)}")
    for r in range(0, 8, 2):
        e(f"v_pk_mul_f32 {vr(o + r, 2)}, {vr(o + r, 2)}, {vr(SB + 6, 2)} op_sel_hi:[1,0]")
    for r in range(4):
        e(f"v_cvt_pk_bf16_f32 v{SB + 12 + r}, v{o + 2 * r}, v{o + 2 * r + 1}")
    return k.vmem(f"buffer_store_dwordx4 {vr(SB + 12, 4)}, v{vKA}, s[{SWS}:{SWS + 3}], s{s0} offen sc1")


def slow_path():
    k.label("L_slow")
    MX = 112
    e("s_waitcnt lgkmcnt(0)")
    e("s_barrier")
    e(f"v_mov_b32 v{SB + 4}, 0")
    e(f"ds_write_b32 v{SB + 3}, v{SB + 4}")
    for q in range(4):
        e(f"v_mov_b32 v{MX + q}, 0xff7fffff")
    b = KVB

    def load(with_v):
        e(f"s_lshl_b32 s{s0}, s{s5_}, 13")
        e(f"s_add_u32 s{s0}, s{s0}, s{sKVB}")
        e(f"buffer_load_dwordx4 {vr(b, 4)}, v{vKA}, s[{SWS}:{SWS + 3}], s{s0} offen sc1")
        if with_v:
            e(f"s_mov_b64 exec, s[{sVMASK}:{sVMASK + 1}]")
            e(f"buffer_load_dwordx4 {vr(b + 4, 4)}, v{vVA}, s[{SWS}:{SWS + 3}], s{s0} offen offset:1024 sc1")
            e(f"buffer_load_dwordx4 {vr(b + 8, 4)}, v{vVA}, s[{SWS}:{SWS + 3}], s{s0} offen offset:1536 sc1")
            e("s_mov_b64 exec, -1")
        e("s_waitcnt vmcnt(0)")
    e(f"s_mov_b32 s{s5_}, 0")
    k.label("L_slow1")
    load(False)
    for q in range(4):
        e(f"v_mfma_f32_32x32x16_bf16 {vr(SB, 16)}, {vr(b, 4)}, {vr(QR + 4 * q, 4)}, 0")
        for r in range(0, 16, 2):
            e(f"v_max3_f32 v{MX + q}, v{MX + q}, v{SB + r}, v{SB + r + 1}")
        e("s_nop 1")
    e(f"s_add_u32 s{s5_}, s{s5_}, 1")
    e(f"s_cmp_lt_u32 s{s5_}, 16")
    e("s_cbranch_scc1 L_slow1")
    e(f"v_and_b32 v{SB + 1}, 31, v{vL}")
    for q in range(4):
        e(f"v_mov_b32 v{SB}, v{MX + q}")
        e(f"v_permlane32_swap_b32 v{SB}, v{MX + q}")
        e(f"v_max_f32 v{MX + q}, v{MX + q}, v{SB}")
        e(f"s_add_u32 s{s0}, s{sT}, {q + 1}")
        e(f"s_and_b32 s{s0}, s{s0}, 3")
        e(f"s_lshl2_add_u32 s{s0}, s{sF}, s{s0}")
        e(f"s_lshl_b32 s{s0}, s{s0}, 9")
        e(f"s_add_u32 s{s0}, s{s0}, {RED}")
        e(f"v_lshl_add_u32 v{MX + 4 + q}, v{SB + 1}, 4, s{s0}")
        e(f"s_lshl_b32 s{s0}, s{sT}, 2")
        e(f"v_add_u32 v{SB + 2}, s{s0}, v{MX + 4 + q}")
        e(f"ds_write_b32 v{SB + 2}, v{MX + q}")
    e("s_waitcnt lgkmcnt(0)")
    e("s_barrier")
    for q in range(4):
        e(f"ds_read_b128 {vr(SB + 4 * q, 4)}, v{MX + 4 + q}")
    e("s_waitcnt lgkmcnt(0)")
    for q in range(4):
        e(f"v_max3_f32 v{MX + q}, v{SB + 4 * q}, v{SB + 4 * q + 1}, v{SB + 4 * q + 2}")
        e(f"v_max_f32 v{MX + q}, v{MX + q}, v{SB + 4 * q + 3}")
    e("s_barrier")
    zero_o()
    e(f"s_mov_b32 s{s5_}, 0")
    k.label("L_slow2")
    load(True)
    for q in range(4):
        e(f"v_mfma_f32_32x32x16_bf16 {vr(SB, 16)}, {vr(b, 4)}, {vr(QR + 4 * q, 4)}, 0")
        for r in range(16):
            e(f"v_sub_f32 v{SB + r}, v{SB + r}, v{MX + q}")
        for r in range(16):
            e(f"v_exp_f32 v{SB + r}, v{SB + r}")
        e(f"v_smfmac_f32_32x32x32_bf16 {vr(OA + 16 * q, 16)}, {vr(b + 4, 4)}, {vr(SB, 8)}, v{vIDX}")
        e(f"v_smfmac_f32_32x32x32_bf16 {vr(OA + 16 * q, 16)}, {vr(b + 8, 4)}, {vr(SB + 8, 8)}, v{vIDX}")
    e("s_nop 15")
    e(f"s_add_u32 s{s5_}, s{s5_}, 1")
    e(f"s_cmp_lt_u32 s{s5_}, 16")
    e("s_cbranch_scc1 L_slow2")
    for q in range(3):
        red_send(q)
    e("s_waitcnt lgkmcnt(0)")
    e("s_barrier")
    e("s_branch L_reduce")


def finish():
    k.label("L_finish")
    if STOP is None:
        e(f"s_or_b32 s{s0}, s2, s{sWv}")
        e(f"s_cmp_lg_u32 s{s0}, 0")
        e("s_cbranch_scc1 L_nogen")
        e(f"v_mov_b32 v10, {WS_G}")
        flag_store(10, vTAG)
        k.label("L_nogen")
    if DEV:
        stamp("end")
        assert len(stamp_names) <= 30
        e(f"s_lshl3_add_u32 s{s0}, s2, s{sWv}")
        e(f"s_lshl_b32 s{s0}, s{s0}, 7")
        e(f"s_add_u32 s{s0}, s{s0}, {WS_TS}")
        e("s_mov_b64 exec, 1")
        e("v_mov_b32 v10, 0")
        for i in range(len(stamp_names)):
            e(f"v_mov_b32 v11, s{sSTAMP0 + i}")
            e(f"buffer_store_dword v11, v10, s[{SWS}:{SWS + 3}], s{s0} offen offset:{4 * i}")
        e(f"v_mov_b32 v11, s{sABORT}")
        e(f"buffer_store_dword v11, v10, s[{SWS}:{SWS + 3}], s{s0} offen offset:124")
    if SPIN:
        a, b, n = SPIN.split(",")
        e(f"s_cmp_lg_u32 s{sWv}, 0")
        e("s_cbranch_scc1 L_end")
        e(f"s_sub_u32 s{s0}, s{sSTAMP0 + stamp_names.index(b)}, s{sSTAMP0 + stamp_names.index(a)}")
        e(f"s_mul_i32 s{s0}, s{s0}, {n}")
        e(f"s_min_u32 s{s0}, s{s0}, 100000")
        k.label("L_spin")
        e(f"s_memrealtime s[{sSTMP}:{sSTMP + 1}]")
        e("s_waitcnt lgkmcnt(0)")
        e(f"s_sub_u32 s{s1}, s{sSTMP}, s{sSTAMP0 + stamp_names.index('end')}")
        e(f"s_cmp_lt_u32 s{s1}, s{s0}")
        e("s_cbranch_scc1 L_spin")
    if DBG:
        sel = DBG.split(",")
        e(f"s_cmp_lg_u32 s{sT}, 0")
        e("s_cbranch_scc1 L_end")
        e(f"s_load_dwordx2 s[{ST}:{ST + 1}], s[0:1], 72")
        e(f"s_mov_b32 s{ST + 2}, 256")
        e(f"s_mov_b32 s{ST + 3}, 0x20000")
        e("s_mov_b64 exec, -1")
        e("v_mov_b32 v11, 0")
        e(f"s_not_b32 s{s0}, s{sSTAMP0}")
        e(f"v_writelane_b32 v11, s{s0}, 0")
        for i, n in enumerate(sel):
            e(f"v_writelane_b32 v11, s{sSTAMP0 + stamp_names.index(n)}, {i + 1}")
        e(f"v_lshlrev_b32 v10, 2, v{vL}")
        e("s_mov_b64 exec, 0xffff")
        e("s_waitcnt lgkmcnt(0)")
        e(f"buffer_atomic_umax v11, v10, s[{ST}:{ST + 3}], 0 offen")
    k.label("L_end")
    e("s_endpgm")


def main():
    entry()
    toks = [a_issue(0), a_issue(1), a_issue(2)]
    setup_rest()
    if DEV:
        for i in range(1, 30):
            e(f"s_mov_b32 s{sSTAMP0 + i}, 0")
    vm0 = k.vm
    e(f"s_bitcmp1_b32 s{sHP}, 0")
    e("s_cbranch_scc1 L_typeV")
    phase_a(0, toks, vm0)
    e("s_branch L_a_done")
    k.label("L_typeV")
    phase_a(1, toks, vm0)
    k.label("L_a_done")
    e("s_barrier")
    stamp("kv_stored")
    vm1 = k.vm
    e(f"s_cmp_lg_u32 s{sF}, 0")
    e("s_cbranch_scc1 L_f1")
    q_pass()
    attn_setup()
    k.wait(lg="all")
    e("s_barrier")
    e("s_branch L_attn")
    k.label("L_f1")
    k.vm = vm1
    e(f"s_cmp_eq_u32 s{sWv}, 7")
    e("s_cbranch_scc1 L_w7")
    pack_issue()
    k.wait(vm=vm1)
    flag_store(63, vTAG)
    attn_setup()
    e("s_barrier")
    pack_finish()
    e("s_branch L_attn")
    k.label("L_w7")
    k.wait(vm="all")
    flag_store(63, vTAG)
    e(f"v_mov_b32 v{vPF}, {OOB}")
    attn_setup()
    e("s_barrier")
    k.label("L_attn")
    stamp("q_done")
    q_read_and_zero()
    kt = {0: kv_issue(0), 1: kv_issue(1)}
    stamp("kv_seen")
    import phase_c
    phase_c.bind(globals())
    extras = phase_c.attn_extras()
    extras[(13, 1)] = red_setup
    attention(kt, extras)
    range_check()
    k.wait(lg="all")
    e("s_barrier")
    stamp("attn_done")
    k.label("L_reduce")
    otok = attn_reduce()
    if STOP == "attn":
        k.wait(vm="all")
        flag_store(vOFA, vTAG)
        stamp("o_flag")
    else:
        phase_c.run(otok)
    finish()
    for ln in k.tail:
        k.L.append(ln)
    kvpoll_routine()
    phase_c.routines()
    slow_path()
    k.label("L_code_end")
    e("s_endpgm")
    body, npad = pad_hazards(k.L, verbose="-v" in sys.argv)
    hdr = open("cdna_kernels/" + NAME + ".s.ref").read().split("\n")
    head = []
    for ln in hdr:
        if ln.startswith("; @launch"):
            head.append(f"; @launch grid=(256,1,1) block=(512,1,1) lds={LDS_SIZE}")
        else:
            head.append(ln)
        if ln.startswith(NAME + "_kernel:"):
            break
    txt = "\n".join(head) + "\n" + "\n".join(("" if l.endswith(":") else "    ") + l for l in body) + f"""
.section .rodata,"a"
.p2align 6
.amdhsa_kernel {NAME}_kernel
  .amdhsa_next_free_vgpr 256
  .amdhsa_next_free_sgpr 102
  .amdhsa_accum_offset 256
  .amdhsa_group_segment_fixed_size 0
  .amdhsa_kernarg_size 88
  .amdhsa_user_sgpr_count 2
  .amdhsa_user_sgpr_kernarg_segment_ptr 1
  .amdhsa_system_sgpr_workgroup_id_x 1
  .amdhsa_float_denorm_mode_32 3
.end_amdhsa_kernel
"""
    out = [a for a in sys.argv[1:] if not a.startswith("-")]
    path = out[0] if out else "k.s"
    open(path, "w").write(txt)
    open(path + ".stamps", "w").write("\n".join(stamp_names))
    print("wrote", path, "lines", len(body), "pads", npad)


if __name__ == "__main__":
    main()
```

```python
from asmlib import vr


def bind(g):
    globals().update({n: v for n, v in g.items() if not n.startswith("__")})


sT1, sFT1 = 44, 45
W2_P1 = 18
ST_ = {}
vFPA, vFPD = 122, 124
STX = 157696


def WSD():
    return f"s[{SWS}:{SWS + 3}]"


def srd(dst, ptr, nbytes):
    e(f"s_mov_b64 s[{dst}:{dst + 1}], s[{ptr}:{ptr + 1}]")
    e(f"s_mov_b32 s{dst + 2}, {nbytes}")
    e(f"s_mov_b32 s{dst + 3}, 0x20000")


def attn_extras():
    ex = {}
    sSTG, sWOB, sW1B = s4_, s5_, s7_
    vWOD, vWOT, vW1D = 6, 7, 116
    wt = {}

    def add(sl, fn):
        ex.setdefault(sl, []).append(fn)

    def roles(toks):
        e(f"s_lshr_b32 s{s0}, s{sJ}, 4")
        e(f"s_lshl1_add_u32 s{s0}, s{sXCD}, s{s0}")
        e(f"s_and_b32 s{s1}, s{sJ}, 3")
        e(f"s_lshl2_add_u32 s{sT1}, s{s0}, s{s1}")
        e(f"s_and_b32 s{s0}, s{sJ}, 12")
        e(f"s_add_u32 s{sFT1}, s{s0}, s{sT}")
        e(f"s_mul_i32 s{sSTG}, s{sWv}, 12288")
        e(f"s_lshl_b32 s{sWOB}, s{sF}, 18")
        e(f"s_lshl_b32 s{s0}, s{sFT1}, 6")
        e(f"s_add_u32 s{sWOB}, s{sWOB}, s{s0}")
        e(f"s_mul_i32 s{sW1B}, s{sWv}, {64 * 2752}")
        e(f"s_mul_i32 s{s0}, s{sHP}, 192")
        e(f"s_add_u32 s{sW1B}, s{sW1B}, s{s0}")
        srd(SW, pW1, 0x158000)
        tr_lane(112, 113, 2)

    def pack_issue(toks):
        e(f"s_cmp_gt_u32 s{sWv}, 2")
        e("s_cbranch_scc1 L_pki_skip")
        srd(ST, pW2, 0x158000)
        e(f"s_and_b32 s{s0}, s{sHP}, 1")
        e(f"s_lshl1_add_u32 s{s0}, s{sRB}, s{s0}")
        e(f"s_lshl_b32 s{s1}, s{sT}, 5")
        e(f"s_add_u32 s{s0}, s{s0}, s{s1}")
        e(f"s_lshr_b32 s{s1}, s{sHP}, 1")
        e(f"s_mul_i32 s{s2_}, s{s1}, 172")
        e(f"s_add_u32 s{s2_}, s{s2_}, s{s0}")
        e(f"s_lshl_b32 s{s2_}, s{s2_}, 10")
        e(f"s_add_u32 s{s2_}, s{s2_}, {WS_W2}")
        e(f"s_cmp_lt_u32 s{s0}, 86")
        e(f"s_cselect_b32 s{sPK}, s{s2_}, {OOB}")
        e(f"s_lshl_b32 s{s0}, s{s0}, 14")
        e(f"s_lshl_b32 s{s1}, s{s1}, 7")
        e(f"s_add_u32 s{s0}, s{s0}, s{s1}")
        e(f"v_lshrrev_b32 v114, 2, v{vL}")
        e("v_and_b32 v114, 4, v114")
        e(f"v_xor_b32 v114, v114, v{vL}")
        e("v_and_b32 v114, 7, v114")
        e(f"v_lshl_add_u32 v114, v114, 4, s{s0}")
        e(f"v_lshrrev_b32 v115, 3, v{vL}")
        e("v_lshl_add_u32 v114, v115, 10, v114")
        e(f"s_add_u32 m0, s{sSTG}, 10240")
        e("v_add_u32 v115, 0x2000, v114")
        e(f"buffer_load_dwordx4 v114, s[{ST}:{ST + 3}], 0 offen lds")
        e(f"s_add_u32 m0, s{sSTG}, 11264")
        e(f"buffer_load_dwordx4 v115, s[{ST}:{ST + 3}], 0 offen lds")
        k.label("L_pki_skip")

    def pack_finish(toks):
        e(f"s_cmp_gt_u32 s{sWv}, 2")
        e("s_cbranch_scc1 L_pkf_skip")
        e(f"v_bfe_u32 v114, v{vL}, 3, 1")
        e("v_lshl_add_u32 v114, v114, 6, v113")
        e("v_lshl_add_u32 v114, v112, 7, v114")
        e(f"v_add_u32 v114, s{sSTG}, v114")
        e("v_xor_b32 v115, 64, v114")
        r = WOR + 56
        for ff in range(2):
            e(f"ds_read_b64_tr_b16 {vr(r + 4 * ff, 2)}, v{114 + ff} offset:10240")
            e(f"ds_read_b64_tr_b16 {vr(r + 4 * ff + 2, 2)}, v{114 + ff} offset:11264")
        e(f"v_add_u32 v119, s{sPK}, v{vKA}")
        e(f"s_mov_b32 s{s0}, {86 * 1024}")
        e("s_waitcnt lgkmcnt(0)")
        e(f"buffer_store_dwordx4 {vr(r, 4)}, v119, {WSD()}, 0 offen sc1")
        e(f"buffer_store_dwordx4 {vr(r + 4, 4)}, v119, {WSD()}, s{s0} offen sc1")
        e("s_nop 0")
        k.label("L_pkf_skip")

    def pack_flag(toks):
        e(f"s_lshr_b32 s{s0}, s{sHP}, 1")
        e(f"s_lshl_b32 s{s0}, s{s0}, 12")
        e(f"s_add_u32 s{s0}, s{s0}, {WS_FP}")
        e(f"v_lshrrev_b32 v{vFPA}, 1, v{vL}")
        e(f"v_lshl_add_u32 v{vFPA}, v{vFPA}, 7, s{s0}")
        e(f"v_and_b32 v119, 16, v{vKA}")
        e(f"v_add_u32 v{vFPA}, v{vFPA}, v119")
        e(f"s_and_b32 s{s1}, s{sHP}, 1")
        e(f"s_lshl1_add_u32 s{s1}, s{sRB}, s{s1}")
        e(f"s_lshl4_add_u32 s{s1}, s{s1}, s{sT}")
        e(f"s_lshl3_add_u32 s{s0}, s{s1}, s{s0}")
        e(f"s_cmp_eq_u32 s{sF}, 0")
        e(f"s_cselect_b32 s{s0}, s{s0}, {OOB}")
        e(f"v_mov_b32 v119, s{s0}")
        flag_store(119, vTAG)

    def addrs(toks):
        srd(ST, pWO, 0x80000)
        e(f"v_lshrrev_b32 v{vWOD}, 2, v{vL}")
        e(f"v_and_b32 v{vWOT}, 0x30, v{vKA}")
        e(f"v_lshl_add_u32 v{vWOD}, v{vWOD}, 10, v{vWOT}")
        e(f"s_lshl_b32 s{s0}, s{sF}, 5")
        e(f"v_xor_b32 v{vWOT}, s{s0}, v113")
        e(f"v_lshl_add_u32 v{vWOT}, v112, 6, v{vWOT}")
        e(f"v_add_u32 v{vWOT}, s{sSTG}, v{vWOT}")

    def w1_addrs(toks):
        e(f"s_movk_i32 s{s0}, {2752 - 192}")
        for j in range(3):
            e(f"v_add_u32 v119, {64 * j}, v{vL}")
            e(f"v_mul_u32_u24 v{vW1D + j}, 171, v119")
            e(f"v_lshrrev_b32 v{vW1D + j}, 11, v{vW1D + j}")
            e("v_lshlrev_b32 v119, 4, v119")
            e(f"v_mad_u32_u24 v{vW1D + j}, v{vW1D + j}, s{s0}, v119")

    def wo_dma(i):
        def f(toks):
            if i >= 12:
                k.wait(lg="all")
            e(f"s_add_u32 m0, s{sSTG}, {(i % 12) * 1024}")
            e(f"s_add_u32 s{s0}, s{sWOB}, {i * 16384}")
            wt[i] = k.vmem(f"buffer_load_dwordx4 v{vWOD}, s[{ST}:{ST + 3}], s{s0} offen lds")
        return f

    def wo_read(i):
        def f(toks):
            k.wait(vm=wt[i])
            k.lds(f"ds_read_b64_tr_b16 {vr(WOR + 4 * i, 2)}, v{vWOT} offset:{(i % 12) * 1024}")
            k.lds(f"ds_read_b64_tr_b16 {vr(WOR + 4 * i + 2, 2)}, v{vWOT} offset:{(i % 12) * 1024 + 512}")
        return f

    def w1_dma(sl):
        def f(toks):
            k.wait(lg="all")
            e(f"s_add_u32 m0, s{sSTG}, {sl * 1024}")
            e(f"s_add_u32 s{s0}, s{sW1B}, {(sl // 3) * 16 * 2752}")
            ST_["w1"] = k.vmem(f"buffer_load_dwordx4 v{vW1D + sl % 3}, s[{SW}:{SW + 3}], s{s0} offen lds")
        return f

    def xres_issue(toks):
        e(f"v_and_b32 v119, 31, v{vL}")
        e(f"v_lshlrev_b32 v119, 10, v119")
        e(f"v_lshrrev_b32 v{vXRES}, 5, v{vL}")
        e(f"v_lshl_add_u32 v119, v{vXRES}, 3, v119")
        e(f"s_lshl1_add_u32 s{s0}, s{sFT1}, s{sF}")
        e(f"s_lshl_b32 s{s0}, s{s0}, 5")
        e(f"s_lshl_b32 s{s1}, s{sT1}, 15")
        e(f"s_add_u32 s{s0}, s{s0}, s{s1}")
        k.vmem(f"buffer_load_dwordx2 {vr(vXRES, 2)}, v119, s[{SX}:{SX + 3}], s{s0} offen")
        k.vmem(f"buffer_load_dwordx2 {vr(vXRES + 2, 2)}, v119, s[{SX}:{SX + 3}], s{s0} offen offset:16")

    def touch(toks):
        e(f"s_lshl_b32 s{s0}, s{sXCD}, 11")
        e(f"s_lshl_b32 s{s1}, s{sWv}, 8")
        e(f"s_add_u32 s{s0}, s{s0}, s{s1}")
        e(f"v_lshlrev_b32 v119, 2, v{vL}")
        e(f"s_add_u32 s{s1}, s{s0}, {WS_FO}")
        k.vmem(f"buffer_load_dword v{vPT}, v119, {WSD()}, s{s1} offen sc1")
        e(f"s_add_u32 s{s1}, s{s0}, {WS_FH}")
        k.vmem(f"buffer_load_dword v{vPT}, v119, {WSD()}, s{s1} offen sc1")
        e(f"s_lshl1_add_u32 s{s1}, s{s0}, {WS_FG}")
        e(f"v_lshlrev_b32 v119, 3, v{vL}")
        k.vmem(f"buffer_load_dword v{vPT}, v119, {WSD()}, s{s1} offen sc1")

    def fp_issue(toks):
        e(f"s_cmp_eq_u32 s{sF}, 0")
        e("s_cbranch_scc1 L_fp_skip")
        e(f"buffer_load_dwordx4 {vr(vFPD, 4)}, v{vFPA}, {WSD()}, 0 offen sc1")
        k.label("L_fp_skip")

    add((3, 1), roles)
    add((3, 2), pack_issue)
    add((3, 3), addrs)
    add((6, 0), pack_finish)
    add((9, 0), pack_flag)
    add((8, 0), w1_addrs)
    jobs = [wo_dma(i) for i in range(16)] + [w1_dma(sl) for sl in list(range(4, 12)) + list(range(4))]
    for n, jb in enumerate(jobs):
        add((4 + n // 3, 1 + n % 3), jb)
    for i in range(16):
        add((7 + i // 3, 1 + i % 3), wo_read(i))
    add((13, 2), xres_issue)
    add((14, 0), touch)
    add((14, 2), fp_issue)
    return ex


def fp_cmp():
    return [f"v_cmp_ne_u64 vcc, s[{sTAG}:{sTAG + 1}], {vr(vFPD, 2)}",
            f"s_mov_b64 s[{s2_}:{s2_ + 1}], vcc",
            f"v_cmp_ne_u64 vcc, s[{sTAG}:{sTAG + 1}], {vr(vFPD + 2, 2)}",
            f"s_or_b64 s[{s2_}:{s2_ + 1}], s[{s2_}:{s2_ + 1}], vcc"]


def routines():
    if STOP == "attn":
        return
    k.label("L_pk_stub")
    e(f"buffer_load_dwordx4 {vr(vFPD, 4)}, v{vFPA}, {WSD()}, 0 offen sc1")
    e(f"s_add_u32 s{sABORT}, s{sABORT}, 1")
    e(f"s_cmp_gt_u32 s{sABORT}, 0x20000")
    e("s_waitcnt vmcnt(0)")
    e("s_cbranch_scc1 L_pk_ret")
    for x in fp_cmp():
        e(x)
    e("s_cbranch_scc1 L_pk_stub")
    e("s_branch L_pk_ret")


def all_set():
    e("s_cmp_eq_u64 vcc, -1")


def tau(n):
    return 3 * n if n < 15 else (3 * (n - 15) + 1 if n < 29 else 3 * (n - 29) + 2)


def slot(n):
    return 102400 + 4096 * n if n < 15 else (4096 * (n - 15) if n < 40 else 102400 + 4096 * (n - 40))


A3 = 84
AC3 = 24
B3 = 56
sW2B = 26


def w2_issue(n0, n1):
    tok = None
    for n in range(n0, n1):
        e(f"s_add_u32 s{s0}, s{sW2B}, {tau(n) * 2048}")
        tok = k.vmem(f"buffer_load_dwordx4 {vr(A3 + 4 * n, 4)}, v{vKA}, {WSD()}, s{s0} offen sc1")
    return tok


def c1(otok):
    AC, BR = 24, 40
    e("s_barrier")
    e(f"s_lshl3_add_u32 s{s4_}, s{sT1}, s{sWv}")
    e(f"s_lshl_b32 s{s0}, s{s4_}, 5")
    e(f"s_add_u32 s{s0}, s{s0}, {WS_FO}")
    e(f"v_and_b32 v4, 3, v{vL}")
    e(f"v_lshl_add_u32 v4, v4, 3, s{s0}")
    e(f"s_lshl_b32 s{s4_}, s{s4_}, 12")
    e(f"s_add_u32 s{s4_}, s{s4_}, {WS_O}")
    e(f"s_lshl_b32 s{s0}, s{sWv}, 12")
    e(f"s_add_u32 m0, s{s0}, {OST}")
    e(f"s_lshl_b32 s{s0}, s{sF}, 14")
    e(f"s_add_u32 s{s0}, s{s0}, {OST}")
    e(f"v_add_u32 v5, s{s0}, v{vKA}")
    e(f"s_lshl_b32 s{s0}, s{sWv}, 11")
    e(f"s_add_u32 s{s1}, s{s0}, {C1X}")
    e(f"v_add_u32 v6, s{s1}, v{vKA}")
    e(f"s_xor_b32 s{s0}, s{s0}, 8192")
    e(f"s_add_u32 s{s1}, s{s0}, {C1X}")
    e(f"v_add_u32 v7, s{s1}, v{vKA}")
    e(f"s_lshl_b32 s{s0}, s{sWv}, 9")
    e(f"s_add_u32 s{s0}, s{s0}, {STX}")
    e(f"v_lshl_add_u32 v12, v{vL}, 3, s{s0}")
    e(f"s_and_b32 s{s0}, s{sHP}, 14")
    e(f"s_and_b32 s{s1}, s{sT}, 1")
    e(f"s_add_u32 s{s0}, s{s0}, s{s1}")
    e(f"s_mul_i32 s{s0}, s{s0}, 86")
    e(f"s_lshr_b32 s{s1}, s{sT}, 1")
    e(f"s_add_u32 s{s0}, s{s0}, s{s1}")
    e(f"s_lshl_b32 s{s0}, s{s0}, 10")
    e(f"s_add_u32 s{sW2B}, s{s0}, {WS_W2}")
    k.wait(vm=otok)
    flag_store(vOFA, vTAG, local=True)
    stamp("o_flag")
    ptok = apoll_issue(4, vPT)
    for j in range(4):
        e(f"v_lshlrev_b32 v{AC + 2 * j}, 16, v{vXRES + j}")
        e(f"v_and_b32 v{AC + 2 * j + 1}, 0xffff0000, v{vXRES + j}")
    for r in range(8, 16):
        e(f"v_mov_b32 v{AC + r}, 0")
    e("v_mov_b32 v10, 0")
    e("v_mov_b32 v11, 0")
    apoll_check(ptok, 4, vPT, "o")
    stamp("o_seen")
    for i in range(4):
        dt = k.vmem(f"buffer_load_dwordx4 v{vKA}, {WSD()}, s{s4_} offen offset:{i * 1024} sc1 lds")
    e(f"s_lshl1_add_u32 s{s0}, s{sFT1}, s{sF}")
    e(f"s_lshl_b32 s{s1}, s{sT1}, 5")
    e(f"s_add_u32 s{s0}, s{s0}, s{s1}")
    e(f"s_lshl3_add_u32 s{s1}, s{s0}, {WS_FH}")
    e(f"v_mov_b32 v{vOFA}, s{s1}")
    e(f"s_lshl_b32 s{s0}, s{s0}, 10")
    e(f"s_add_u32 s{s4_}, s{s0}, {WS_H}")
    k.wait(vm=dt)
    e("s_barrier")
    stamp("o_landed")
    LA = 8
    toks = {}

    def rd(i):
        toks[i] = k.lds(f"ds_read_b128 {vr(BR + 4 * (i % 10), 4)}, v5 offset:{i * 1024}")
    for i in range(LA):
        rd(i)
    e(f"s_cmp_eq_u32 s{sF}, 0")
    e("s_cbranch_scc1 L_c1_go")
    for x in fp_cmp():
        e(x)
    e("s_cbranch_scc1 L_pk_stub")
    k.label("L_pk_ret")
    vm = k.vm
    w2_issue(0, W2_P1 // 2)
    k.vm = vm
    k.label("L_c1_go")
    for i in range(16):
        k.wait(lg=toks[i])
        e(f"v_mfma_f32_32x32x16_bf16 {vr(AC, 16)}, {vr(WOR + 4 * i, 4)}, {vr(BR + 4 * (i % 10), 4)}, {vr(AC, 16)}")
        if i + LA < 16:
            rd(i + LA)
    k.lds(f"ds_write_b128 v7, {vr(AC + 8, 4)}")
    k.lds(f"ds_write_b128 v7, {vr(AC + 12, 4)} offset:1024")
    k.wait(lg="all")
    e("s_barrier")
    t1 = k.lds(f"ds_read_b128 {vr(BR, 4)}, v6")
    t2 = k.lds(f"ds_read_b128 {vr(BR + 4, 4)}, v6 offset:1024")
    k.wait(lg=t1)
    for r in range(0, 8, 2):
        if r == 4:
            k.wait(lg=t2)
        e(f"v_pk_add_f32 {vr(AC + r, 2)}, {vr(AC + r, 2)}, {vr(BR + r, 2)}")
    for r in range(4):
        e(f"v_cvt_pk_bf16_f32 v{vXRES + r}, v{AC + 2 * r}, v{AC + 2 * r + 1}")
    htok = local_stores([f"buffer_store_dwordx4 {vr(vXRES, 4)}, v{vKA}, {WSD()}, s{s4_} offen"])
    stamp("h_st")
    for r in range(4):
        e(f"v_dot2c_f32_bf16 v10, s{sONES}, v{vXRES + r}")
        e(f"v_dot2c_f32_bf16 v11, v{vXRES + r}, v{vXRES + r}")
    k.lds("ds_write_b64 v12, v[10:11]")
    k.wait(lg="all")
    e("s_barrier")
    return htok


HB, AC2, AR = 124, 76, 28
vA0, vA1, vAUG = 2, 5, 6
vC0, vSD = 12, 14
BATCH = 3
NB = (43 + BATCH - 1) // BATCH
sGB = 27


def gelu_ops(acc, tmp, out, packed):
    L = []
    if packed:
        P = range(0, 16, 2)
        L += [f"v_pk_mul_f32 {vr(tmp + r, 2)}, {vr(acc + r, 2)}, {vr(acc + r, 2)}" for r in P]
        L += [f"v_pk_fma_f32 {vr(tmp + r, 2)}, {vr(tmp + r, 2)}, {vr(vC0, 2)}, {vr(vC0, 2)} op_sel:[0,1,0] op_sel_hi:[1,1,0]" for r in P]
        L += [f"v_pk_mul_f32 {vr(tmp + r, 2)}, {vr(tmp + r, 2)}, {vr(acc + r, 2)}" for r in P]
        L += [f"v_exp_f32 v{tmp + r}, v{tmp + r}" for r in range(16)]
        L += [f"v_pk_fma_f32 {vr(tmp + r, 2)}, {vr(tmp + r, 2)}, {vr(vSD, 2)}, {vr(vSD, 2)} op_sel_hi:[1,0,0]" for r in P]
        L += [f"v_rcp_f32 v{tmp + r}, v{tmp + r}" for r in range(16)]
        L += [f"v_pk_mul_f32 {vr(tmp + r, 2)}, {vr(tmp + r, 2)}, {vr(acc + r, 2)}" for r in P]
    else:
        R = range(16)
        L += [f"v_mul_f32 v{tmp + r}, v{acc + r}, v{acc + r}" for r in R]
        L += [f"v_fma_f32 v{tmp + r}, v{tmp + r}, v{vC0 + 1}, v{vC0}" for r in R]
        L += [f"v_mul_f32 v{tmp + r}, v{tmp + r}, v{acc + r}" for r in R]
        L += [f"v_exp_f32 v{tmp + r}, v{tmp + r}" for r in R]
        L += [f"v_fma_f32 v{tmp + r}, v{tmp + r}, v{vSD}, v{vSD}" for r in R]
        L += [f"v_rcp_f32 v{tmp + r}, v{tmp + r}" for r in R]
        L += [f"v_mul_f32 v{tmp + r}, v{tmp + r}, v{acc + r}" for r in R]
    L += [f"v_cvt_pk_bf16_f32 v{out + r}, v{tmp + 2 * r}, v{tmp + 2 * r + 1}" for r in range(8)]
    return L


def cost(x):
    return 8 if x.startswith("v_exp") or x.startswith("v_rcp") or x.startswith("v_sqrt") else 4


def loader_setup():
    e(f"s_and_b32 s{s0}, s{sJ}, 3")
    e(f"s_lshl2_add_u32 s{s0}, s{sXCD}, s{s0}")
    e(f"s_lshr_b32 s{s1}, s{sT}, 1")
    e(f"s_lshl1_add_u32 s{sT1}, s{s0}, s{s1}")
    e(f"s_mul_i32 s{sGB}, s{sT1}, 86")
    e(f"s_and_b32 s{s1}, s{sT}, 1")
    e(f"s_add_u32 s{sGB}, s{sGB}, s{s1}")
    e(f"s_lshl_b32 s{sGB}, s{sGB}, 10")
    e(f"s_add_u32 s{sGB}, s{sGB}, {WS_GD}")
    e(f"s_lshl_b32 s{s7_}, s{sT}, 10")


def g_addr(third, dst):
    cnt = 15 if third == 0 else 14
    e(f"v_min_u32 v{dst}, {cnt - 1}, v{vL}")
    e(f"v_mul_u32_u24 v{dst}, 24, v{dst}")
    e(f"s_lshl_b32 s{s0}, s{sT1}, 9")
    e(f"s_add_u32 s{s0}, s{s0}, {WS_FG + third * 8}")
    e(f"v_add_u32 v{dst}, s{s0}, v{dst}")


def g_issue(n):
    e(f"s_add_u32 m0, s{s7_}, {slot(n)}")
    e(f"s_add_u32 s{s0}, s{sGB}, {tau(n) * 2048}")
    return k.vmem(f"buffer_load_dwordx4 v{vKA}, {WSD()}, s{s0} offen sc1 lds")


def w1_lane(dst, tmp):
    tr_lane(dst, tmp, 2)
    e(f"s_movk_i32 s{s0}, 192")
    e(f"v_mad_u32_u24 v{dst}, v{dst}, s{s0}, v{tmp}")


def w1_read(reg, tile, ks, va, vb):
    off = ks * 3072 + tile * 64
    a = va
    if ks >= 20:
        a, off = vb, off - 20 * 3072
    k.lds(f"ds_read_b64_tr_b16 {vr(reg, 2)}, v{a} offset:{off}")
    return k.lds(f"ds_read_b64_tr_b16 {vr(reg + 2, 2)}, v{a} offset:{off + 1536}")


def c2_f0(htok):
    e(f"s_lshl2_add_u32 s{s4_}, s{sRB}, s{sT}")
    e(f"s_lshl_b32 s{s0}, s{s4_}, 8")
    e(f"s_add_u32 s{s0}, s{s0}, {WS_FH}")
    e(f"v_and_b32 v7, 31, v{vL}")
    e(f"v_lshl_add_u32 v4, v7, 3, s{s0}")
    e(f"s_lshl_b32 s{s5_}, s{s4_}, 15")
    e(f"s_add_u32 s{s5_}, s{s5_}, {WS_H}")
    k.wait(vm=htok)
    flag_store(vOFA, vTAG, local=True)
    stamp("h_flag")
    ptok = apoll_issue(4, vPT)
    e(f"s_lshl_b32 s{s0}, s{s4_}, 11")
    e(f"s_add_u32 s{s0}, s{s0}, {WS_ST}")
    e(f"v_lshl_add_u32 v7, v7, 4, s{s0}")
    e(f"v_lshrrev_b32 v10, 5, v{vL}")
    e("v_lshl_add_u32 v7, v10, 10, v7")
    w1_lane(vA0, 10)
    e(f"v_add_u32 v{vA1}, {20 * 3072}, v{vA0}")
    e(f"v_add_u32 v{vAUG}, {AUG}, v{vKA}")
    seq = []
    n2 = 0
    for ks in range(32):
        seq += [(0, ks), (1, ks)]
        if ks % 3 == 2:
            seq.append((2, n2))
            n2 += 1
        if ks == 29:
            seq += [(0, 32), (1, 32)]
    p1 = len(seq)
    seq += [(2, 32)] + [(2, ks) for ks in range(n2, 32)]
    RING, LAA = 6, 4
    R2, TMP, OUT = AR + 24, AR, AR + 16
    at = {}

    def rdA(i):
        tile, ks = seq[i]
        r = R2 + 4 * (i % RING)
        if ks == 32:
            at[i] = k.lds(f"ds_read_b128 {vr(r, 4)}, v{vAUG} offset:{tile * 1024}")
        else:
            at[i] = w1_read(r, tile, ks, vA0, vA1)

    def mfma(i):
        tile, ks = seq[i]
        d = vr(AC2 + 16 * tile, 16)
        e(f"v_mfma_f32_32x32x16_bf16 {d}, {vr(R2 + 4 * (i % RING), 4)}, {vr(HB + 4 * ks, 4)}, {'0' if ks == 0 else d}")
    for i in range(LAA):
        rdA(i)
    apoll_check(ptok, 4, vPT, "h")
    stamp("h_seen")
    LAB = 10
    bt = {}

    def ldB(ks):
        if ks and ks % 4 == 0:
            e(f"s_add_u32 s{s5_}, s{s5_}, 4096")
        bt[ks] = k.vmem(f"buffer_load_dwordx4 {vr(HB + 4 * ks, 4)}, v{vKA}, {WSD()}, s{s5_} offen offset:{(ks & 3) * 1024} sc1")
    for ks in range(LAB):
        ldB(ks)

    def gaddrs():
        e(f"s_mul_i32 s{s1}, s{sHP}, 3")
        for i in range(3):
            e(f"s_add_u32 s{s0}, s{s1}, {i}")
            e(f"s_mul_i32 s{s2_}, s{s4_}, 43")
            e(f"s_add_u32 s{s2_}, s{s2_}, s{s0}")
            e(f"s_lshl_b32 s{s2_}, s{s2_}, 11")
            e(f"s_add_u32 s{s2_}, s{s2_}, {WS_GD}")
            e(f"s_lshl_b32 s{s3_}, s{s4_}, 6")
            e(f"s_add_u32 s{s3_}, s{s3_}, s{s0}")
            e(f"s_lshl3_add_u32 s{s3_}, s{s3_}, {WS_FG}")
            e(f"s_cmp_lt_u32 s{s0}, 43")
            e(f"s_cselect_b64 s[{s2_}:{s3_}], s[{s2_}:{s3_}], s[{sRF}:{sRF + 1}]")
            e(f"v_add_u32 v{16 + i}, s{s2_}, v{vKA}")
            e(f"v_mov_b32 v{19 + i}, s{s3_}")
    e(f"s_mov_b32 s{sRF}, {OOB}")
    e(f"s_mov_b32 s{sRF + 1}, {OOB}")
    gaddrs()
    GR = TMP
    gl = [f"buffer_load_dwordx4 {vr(GR, 4)}, v7, {WSD()}, 0 offen sc1",
          f"buffer_load_dwordx4 {vr(GR + 4, 4)}, v7, {WSD()}, 0 offen offset:512 sc1"]
    gchk = [f"v_cmp_ne_u64 vcc, s[{sTAG}:{sTAG + 1}], {vr(GR + 2, 2)}",
            f"s_mov_b64 s[{s2_}:{s2_ + 1}], vcc",
            f"v_cmp_ne_u64 vcc, s[{sTAG}:{sTAG + 1}], {vr(GR + 6, 2)}",
            f"s_or_b64 s[{s2_}:{s2_ + 1}], s[{s2_}:{s2_ + 1}], vcc"]
    ab = HB + 128

    def stats():
        e(f"v_add_f32 v10, v{GR}, v{GR + 4}")
        e(f"v_add_f32 v11, v{GR + 1}, v{GR + 5}")
        e(f"v_mov_b32 v{GR}, v10")
        e(f"v_mov_b32 v{GR + 1}, v11")
        e(f"v_mov_b32 v{ab + 2}, 0")
        e(f"v_mov_b32 v{ab + 3}, 0")
        e(f"v_permlane32_swap_b32 v{GR}, v10")
        e(f"v_permlane32_swap_b32 v{GR + 1}, v11")
        e(f"v_add_f32 v10, v{GR}, v10")
        e(f"v_add_f32 v11, v{GR + 1}, v11")
        e("v_mul_f32 v10, 0x3b000000, v10")
        e(f"v_cvt_pk_bf16_f32 v{ab}, -v10, -v10")
        ln_rstd(10, 11, vSD, 15)
        e(f"v_lshrrev_b32 v{ab + 1}, 16, v{vSD}")
        e(f"v_mul_f32 v{vC0}, 0xc0135761, v15")
        e("v_mul_f32 v11, v15, v15")
        e("v_mul_f32 v11, 0x3d372713, v11")
        e(f"v_mul_f32 v{vC0 + 1}, v{vC0}, v11")
    sops = None
    gtok = None
    for i in range(p1):
        tile, ks = seq[i]
        k.wait(vm=bt[ks] if tile == 0 and ks < 32 else None, lg=at[i])
        mfma(i)
        if tile == 0 and ks < 32:
            if ks + LAB < 32:
                ldB(ks + LAB)
            if ks == 8:
                for x in gl:
                    gtok = k.vmem(x)
            if ks == 19:
                k.wait(vm=gtok)
                for x in gchk:
                    e(x)
                e("s_cbranch_scc1 L_gr_stub")
                k.label("L_gr_ret")
                k.tail += ["L_gr_stub:"] + gl + [f"s_add_u32 s{sABORT}, s{sABORT}, 1", f"s_cmp_gt_u32 s{sABORT}, 0x20000",
                                                 "s_waitcnt vmcnt(0)", "s_cbranch_scc1 L_gr_ret"] + gchk + \
                          ["s_cbranch_scc1 L_gr_stub", "s_branch L_gr_ret"]
                sops = capture(stats)
            if ks + LAB == 31:
                e("s_barrier")
        elif sops:
            for x in sops[:3]:
                e(x)
            sops = sops[3:]
        if ks == 32:
            assert not sops
        rdA(i + LAA)
    stamp("c2_p1")

    def gstore(i):
        return local_stores([f"buffer_store_dwordx4 {vr(OUT, 4)}, v{16 + i}, {WSD()}, 0 offen",
                             f"buffer_store_dwordx4 {vr(OUT + 4, 4)}, v{16 + i}, {WSD()}, 0 offen offset:1024"])
    for x in gelu_ops(AC2, TMP, OUT, True):
        e(x)
    g0 = gstore(0)
    stamp("g0_st")
    ops = gelu_ops(AC2 + 16, TMP, OUT, False)
    total = sum(cost(x) for x in ops)
    nrem = len(seq) - p1
    spent = 0
    for i in range(p1, len(seq)):
        k.wait(lg=at[i])
        mfma(i)
        if i + LAA < len(seq):
            rdA(i + LAA)
        if i - p1 == 11:
            k.wait(vm=g0)
            flag_store(19, vTAG, local=True)
        while ops and spent < total * (i - p1 + 1) / nrem:
            spent += cost(ops[0])
            e(ops.pop(0))
    g1 = gstore(1)
    loader_setup()
    g_addr(1, 4)
    g_addr(2, 7)
    for x in gelu_ops(AC2 + 32, TMP, OUT, True):
        e(x)
    k.wait(vm=g1)
    flag_store(20, vTAG, local=True)
    g2 = gstore(2)
    stamp("g2_st")
    bt = {}
    for b in range(NB):
        if b in bt:
            k.wait(vm=bt[b])
        e("s_barrier")
        if b == 0:
            k.wait(vm=g2)
            flag_store(21, vTAG, local=True)
            p1t = apoll_issue(4, vPT)
        if b == 2:
            apoll_check(p1t, 4, vPT, "g1")
        if b == 3:
            p2t = apoll_issue(7, vPT)
        nb = b + 3
        if nb * BATCH >= 15 and nb < NB:
            for n in range(nb * BATCH, min(43, nb * BATCH + BATCH)):
                if n == 29:
                    apoll_check(p2t, 7, vPT, "g2")
                bt[nb] = g_issue(n)
    e("s_barrier")
    e("s_branch L_finish")


def c2_f1(htok):
    k.wait(vm=htok)
    flag_store(vOFA, vTAG, local=True)
    stamp("h_flag")
    e(f"s_cmp_eq_u32 s{sT}, 3")
    e("s_cbranch_scc1 L_c2_w7")
    vm = k.vm
    srd(ST, pB1, 2752)
    e(f"s_mul_i32 s{s0}, s{sHP}, 3")
    e(f"s_add_u32 s{s0}, s{s0}, s{sT}")
    e(f"s_lshl_b32 s{s0}, s{s0}, 6")
    e(f"v_and_b32 v5, 31, v{vL}")
    e(f"v_lshl_add_u32 v5, v5, 1, s{s0}")
    k.vmem(f"buffer_load_ushort v13, v5, s[{ST}:{ST + 3}], 0 offen")
    w1_lane(5, 6)
    e(f"s_lshl_b32 s{s0}, s{sT}, 6")
    e(f"v_add_u32 v5, s{s0}, v5")
    e(f"v_add_u32 v6, {20 * 3072}, v5")
    e("v_mov_b32 v10, 0")
    toks = {}
    for ks in range(6):
        toks[ks] = w1_read(24 + 4 * (ks % 8), 0, ks, 5, 6)
    for ks in range(32):
        k.wait(lg=toks[ks])
        for r in range(4):
            e(f"v_dot2c_f32_bf16 v10, s{sONES}, v{24 + 4 * (ks % 8) + r}")
        if ks + 6 < 32:
            toks[ks + 6] = w1_read(24 + 4 * ((ks + 6) % 8), 0, ks + 6, 5, 6)
    hilo(12, 10, 11)
    e("v_mov_b32 v14, 0")
    e("v_mov_b32 v15, 0")
    e(f"s_lshl_b32 s{s0}, s{sT}, 10")
    e(f"s_add_u32 s{s0}, s{s0}, {AUG}")
    e(f"v_add_u32 v5, s{s0}, v{vKA}")
    k.wait(vm="all")
    e("s_mov_b32 exec_lo, 0")
    e("v_mov_b32 v13, 0")
    e("s_mov_b32 exec_lo, -1")
    k.lds("ds_write_b128 v5, v[12:15]")
    e("s_branch L_c2_join")
    k.label("L_c2_w7")
    e(f"v_and_b32 v5, 31, v{vL}")
    e(f"v_lshrrev_b32 v6, 5, v{vL}")
    e("v_lshlrev_b32 v7, 3, v5")
    e("v_lshl_add_u32 v7, v6, 11, v7")
    e(f"v_add_u32 v7, {STX}, v7")
    for i in range(8):
        k.lds(f"ds_read_b64 {vr(24 + 2 * i, 2)}, v7 offset:{i * 256}")
    e(f"s_lshr_b32 s{s0}, s{sFT1}, 2")
    e(f"s_lshl2_add_u32 s{s0}, s{sT1}, s{s0}")
    e(f"s_lshl_b32 s{s0}, s{s0}, 9")
    e(f"s_add_u32 s{s0}, s{s0}, {WS_ST}")
    e(f"v_lshl_add_u32 v5, v5, 4, s{s0}")
    k.wait(lg="all")
    for a, b in ((24, 26), (28, 30), (32, 34), (36, 38), (24, 28), (32, 36), (24, 32)):
        e(f"v_pk_add_f32 {vr(a, 2)}, {vr(a, 2)}, {vr(b, 2)}")
    e("v_mov_b32 v26, v24")
    e("v_mov_b32 v27, v25")
    e("v_permlane32_swap_b32 v24, v26")
    e("v_permlane32_swap_b32 v25, v27")
    e(f"v_pk_add_f32 {vr(vTAG - 2, 2)}, v[24:25], v[26:27]")
    e("s_mov_b32 exec_hi, 0")
    local_stores([f"buffer_store_dwordx4 {vr(vTAG - 2, 4)}, v5, {WSD()}, 0 offen"])
    e("s_mov_b32 exec_hi, -1")
    k.label("L_c2_join")
    loader_setup()
    srd(ST, pB2, 1024)
    e(f"s_and_b32 s{s0}, s{sHP}, 14")
    e(f"s_and_b32 s{s1}, s{sT}, 1")
    e(f"s_add_u32 s{sFT1}, s{s0}, s{s1}")
    e(f"s_lshl_b32 s{s0}, s{sFT1}, 6")
    e(f"v_lshrrev_b32 v5, 5, v{vL}")
    e(f"v_lshl_add_u32 v5, v5, 3, s{s0}")
    g_addr(0, 4)
    k.wait(lg="all")
    e("s_barrier")
    for j in range(4):
        k.vmem(f"buffer_load_dwordx2 {vr(B3 + 2 * j, 2)}, v5, s[{ST}:{ST + 3}], 0 offen offset:{16 * j}")
    w2_issue(W2_P1 // 2, 43)
    e(f"s_lshr_b32 s{s0}, s{sT}, 1")
    e(f"s_mul_i32 s{s1}, s{s0}, 3072")
    e(f"v_add_u32 v10, s{s1}, v{vKA}")
    e("v_xor_b32 v13, 0x800, v10")
    for i in (1, 2):
        e(f"v_add_u32 v{10 + i}, {i * 65536}, v10")
        e(f"v_add_u32 v{13 + i}, {i * 65536}, v13")
    stamp("w2_iss")
    poll(4, vPT, all_set, "g0")
    stamp("g0_seen")
    e(f"s_lshl_b32 s{s0}, s{sT1}, 4")
    e(f"s_add_u32 s{s0}, s{s0}, s{sFT1}")
    e(f"s_lshl_b32 s{s0}, s{s0}, 11")
    e(f"s_add_u32 s{s0}, s{s0}, {WS_H}")
    k.vmem(f"buffer_load_dwordx4 {vr(B3 + 8, 4)}, v{vKA}, {WSD()}, s{s0} offen sc1")
    ht = k.vmem(f"buffer_load_dwordx4 {vr(B3 + 12, 4)}, v{vKA}, {WSD()}, s{s0} offen offset:1024 sc1")
    gt = {}
    for n in range(15):
        gt[n // BATCH] = g_issue(n)
    k.wait(vm=ht)
    for d in range(8):
        e(f"v_lshlrev_b32 v{AC3 + 2 * d}, 16, v{B3 + 8 + d}")
        e(f"v_and_b32 v{AC3 + 2 * d + 1}, 0xffff0000, v{B3 + 8 + d}")
        e(f"v_lshlrev_b32 v{B3 + 16}, 16, v{B3 + d}")
        e(f"v_and_b32 v{B3 + 17}, 0xffff0000, v{B3 + d}")
        e(f"v_pk_add_f32 {vr(AC3 + 2 * d, 2)}, {vr(AC3 + 2 * d, 2)}, {vr(B3 + 16, 2)}")
    e(f"v_and_b32 v5, 31, v{vL}")
    e("v_lshlrev_b32 v5, 10, v5")
    e(f"v_lshrrev_b32 v6, 5, v{vL}")
    e("v_lshl_add_u32 v5, v6, 4, v5")
    e(f"s_lshl_b32 s{s0}, s{sT1}, 15")
    e(f"s_lshl_b32 s{s1}, s{sFT1}, 6")
    e(f"s_add_u32 s{s4_}, s{s0}, s{s1}")
    XC = 114688
    e(f"s_lshl_b32 s{s0}, s{sT}, 12")
    e(f"s_add_u32 s{s1}, s{s0}, {XC}")
    e(f"v_add_u32 v6, s{s1}, v{vKA}")
    e("v_xor_b32 v7, 0x2000, v6")
    LA = 2
    rt = {}

    def rdB(n):
        if n % BATCH == 0:
            if n // BATCH in gt:
                k.wait(vm=gt[n // BATCH])
            e("s_barrier")
            if n == 0:
                stamp("g_first")
        a = slot(n)
        for i in range(2):
            rt[n] = k.lds(f"ds_read_b128 {vr(B3 + 8 * (n % 3) + 4 * i, 4)}, v{10 + 3 * i + (a >> 16)} offset:{a & 0xffff}")
    for n in range(LA):
        rdB(n)
    for n in range(43):
        if n + LA < 43:
            rdB(n + LA)
        k.wait(lg=rt[n])
        for i in (1, 0):
            c = "0" if (n == 0 and i == 1) else vr(AC3 + 16 * i, 16)
            e(f"v_mfma_f32_32x32x16_bf16 {vr(AC3 + 16 * i, 16)}, {vr(A3 + 4 * n, 4)}, {vr(B3 + 8 * (n % 3) + 4 * i, 4)}, {c}")
    stamp("c3_mfma")
    for j in range(4):
        k.lds(f"ds_write_b128 v7, {vr(AC3 + 16 + 4 * j, 4)} offset:{j * 1024}")
    k.wait(lg="all")
    e("s_barrier")
    tk = []
    for j in range(4):
        tk.append(k.lds(f"ds_read_b128 {vr(B3 + 4 * j, 4)}, v6 offset:{j * 1024}"))
    O = 84
    for j in range(4):
        k.wait(lg=tk[j])
        for r in (0, 2):
            e(f"v_pk_add_f32 {vr(AC3 + 4 * j + r, 2)}, {vr(AC3 + 4 * j + r, 2)}, {vr(B3 + 4 * j + r, 2)}")
        for r in (0, 1):
            e(f"v_cvt_pk_bf16_f32 v{O + 2 * j + r}, v{AC3 + 4 * j + 2 * r}, v{AC3 + 4 * j + 2 * r + 1}")
        if j & 1:
            o = O + 2 * (j - 1)
            e(f"v_permlane32_swap_b32 v{o}, v{o + 2}")
            e(f"v_permlane32_swap_b32 v{o + 1}, v{o + 3}")
            k.vmem(f"buffer_store_dwordx4 {vr(o, 4)}, v5, s[{SOUT}:{SOUT + 3}], s{s4_} offen offset:{16 * (j - 1)}")


def run(otok):
    htok = c1(otok)
    vm = k.vm
    e(f"s_cmp_lg_u32 s{sF}, 0")
    e("s_cbranch_scc1 L_c2_f1")
    c2_f0(htok)
    k.label("L_c2_f1")
    k.vm = vm
    c2_f1(htok)
```

```python
import sys
from asmlib import K, pad_hazards, vr, sr

NAME = "sequential_preLN__softmax_full_mha__dense_activation_gelu__prompt"
DEV = "--dev" in sys.argv
STOP = None
for a in sys.argv:
    if a.startswith("--stop="):
        STOP = a.split("=")[1]
FORCE_SLOW = "--force-slow" in sys.argv
IMPURE = "--impure" in sys.argv
SPIN = ([a.split("=")[1] for a in sys.argv if a.startswith("--spin=")] + [""])[0]
DBG = ([a.split("=")[1] for a in sys.argv if a.startswith("--dbg=")] + [""])[0]
FINE = ([a.split("=")[1] for a in sys.argv if a.startswith("--fine=")] + [""])[0]
CLK = "s_memtime" if "--cyc" in sys.argv else "s_memrealtime"

WS_G = 0x0
WS_FKL = 0x2000
WS_FO = 0xC000
WS_FH = 0x10000
WS_FG = 0x14000
WS_ST = 0x20000
WS_XT = 0x40000
WS_FP = 0x48000
WS_FKV = 0x50000
WS_TS = 0x160000
WS_KV = 0x200000
WS_O = 0x600000
WS_H = 0x800000
WS_GD = 0xA00000
WS_W2 = 0x1000000
WS_KVL = 0x1200000
WS_SIZE = 0x1600000
OOB = 0x40000000

XRING = 0
WRING = 65536
QF = 98304
MISC = 106496
EXCH = 108544
WQ = 131072
PACK = 0
W1L = 0
AUG = 98304
RED = 108544
OST = 108544
C1X = 141312
LDS_SIZE = 163840

sONES = 3
SX, SW, SWS, SOUT, ST = 4, 8, 12, 16, 20
pWO, pW1, pB1, pW2, pB2 = 28, 32, 34, 36, 38
sTAG = 46
sWv, sT, sF, sXCD, sJ, sRB, sHP, sC = 48, 49, 50, 51, 52, 53, 54, 55
sXB, sWB = 56, 57
s0, s1, s2_, s3_, s4_, s5_, s6_, s7_ = 58, 59, 60, 61, 62, 63, 64, 65
sMASK, sABORT, sKVB, sVMASK = 66, 67, 68, 40
sRET = 42
sROT = 69
sPURE = 30
sXE = 31
sSTMP = 24
sSTAMP0 = 70
NSTAMP = 14
sPK = 84
sRF = 92
sFKB = 100

ROT = [int(x) for x in ([a.split('=')[1] for a in sys.argv if a.startswith('--rot=')] + ['1,1,4'])[0].split(',')]
def opt(name, default):
    return [int(x) for x in ([a.split('=')[1] for a in sys.argv if a.startswith('--' + name + '=')] + [default])[0].split(',')]


RST = opt("rst", "0,1,2,3")
LFN = opt("lfn", "8")[0]
RFL = opt("rfl", "0")[0]
k = K()
e = k.e
stamp_names = []


ONLY = ([a.split("=")[1].split(",") for a in sys.argv if a.startswith("--only=")] + [None])[0]


def stamp(name):
    if not DEV or (ONLY is not None and name not in ONLY and name != "end"):
        return
    if name not in stamp_names:
        stamp_names.append(name)
    i = stamp_names.index(name)
    assert i < NSTAMP, name
    e(f"{CLK} s[{sSTMP}:{sSTMP + 1}]")
    e("s_waitcnt lgkmcnt(0)")
    e(f"s_mov_b32 s{sSTAMP0 + i}, s{sSTMP}")


def bf16_rne(dst, src):
    e(f"v_cvt_pk_bf16_f32 v{dst}, v{src}, v{src}")
    e(f"v_and_b32 v{dst}, 0xffff0000, v{dst}")


def ln_rstd(vmean, vsq, vsd, vrstd):
    e(f"v_mul_f32 v{vsq}, 0x3b000000, v{vsq}")
    e(f"v_fma_f32 v{vsq}, -v{vmean}, v{vmean}, v{vsq}")
    e(f"v_max_f32 v{vsq}, 0, v{vsq}")
    bf16_rne(vsq, vsq)
    e(f"v_add_f32 v{vsq}, 0x3727c5ac, v{vsq}")
    bf16_rne(vsq, vsq)
    e(f"v_sqrt_f32 v{vsq}, v{vsq}")
    bf16_rne(vsd, vsq)
    e(f"v_rcp_f32 v{vrstd}, v{vsd}")


def poll(vaddr, vtmp, cond, name):
    lp = k.newlabel("Lpoll_" + name)
    dn = k.newlabel("Lpolld_" + name)
    k.label(lp)
    e(f"buffer_load_dwordx2 v[{vtmp}:{vtmp + 1}], v{vaddr}, s[{SWS}:{SWS + 3}], 0 offen sc1")
    e(f"s_add_u32 s{sABORT}, s{sABORT}, 1")
    e(f"s_cmp_gt_u32 s{sABORT}, 0x20000")
    e(f"s_cbranch_scc1 {dn}")
    e("s_waitcnt vmcnt(0)")
    e(f"v_cmp_eq_u64 vcc, s[{sTAG}:{sTAG + 1}], v[{vtmp}:{vtmp + 1}]")
    cond()
    e(f"s_cbranch_scc0 {lp}")
    k.label(dn)
    e("s_waitcnt vmcnt(0)")


def local_stores(instrs):
    stub, ret = k.newlabel("Lst"), k.newlabel("Lsr")
    e(f"s_cmp_eq_u32 s{sPURE}, 0")
    e(f"s_cbranch_scc1 {stub}")
    tok = None
    for x in instrs:
        if x.startswith("buffer"):
            tok = k.vmem(x)
        else:
            e(x)
    k.label(ret)
    k.tail += [stub + ":"] + [x + (" sc1" if x.startswith("buffer") else "") for x in instrs] + ["s_nop 0", f"s_branch {ret}"]
    return tok


def flag_store(vaddr, vtag, local=False):
    e("s_mov_b64 exec, 1")
    x = f"buffer_store_dwordx2 v[{vtag}:{vtag + 1}], v{vaddr}, s[{SWS}:{SWS + 3}], 0 offen"
    tok = local_stores([x]) if local else k.vmem(x + " sc1")
    e("s_mov_b64 exec, -1")
    return tok


def apoll_issue(vaddr, vtmp):
    return k.vmem(f"buffer_load_dwordx2 v[{vtmp}:{vtmp + 1}], v{vaddr}, s[{SWS}:{SWS + 3}], 0 offen sc1")


def apoll_check(tok, vaddr, vtmp, name):
    stub, ret = k.newlabel("Lap_" + name), k.newlabel("Lar_" + name)
    k.wait(vm=tok)
    e(f"v_cmp_ne_u64 vcc, s[{sTAG}:{sTAG + 1}], v[{vtmp}:{vtmp + 1}]")
    e(f"s_cbranch_vccnz {stub}")
    k.label(ret)
    k.tail += [stub + ":",
               f"buffer_load_dwordx2 v[{vtmp}:{vtmp + 1}], v{vaddr}, s[{SWS}:{SWS + 3}], 0 offen sc1",
               f"s_add_u32 s{sABORT}, s{sABORT}, 1",
               f"s_cmp_gt_u32 s{sABORT}, 0x20000",
               "s_waitcnt vmcnt(0)",
               f"s_cbranch_scc1 {ret}",
               f"v_cmp_ne_u64 vcc, s[{sTAG}:{sTAG + 1}], v[{vtmp}:{vtmp + 1}]",
               f"s_cbranch_vccnz {stub}",
               f"s_branch {ret}"]


def hilo(dst, src, tmp):
    bf16_rne(tmp, src)
    e(f"v_sub_f32 v{src}, v{src}, v{tmp}")
    e(f"v_cvt_pk_bf16_f32 v{dst}, v{tmp}, v{src}")


vL = 1
vXD, vWD, vQD = 2, 4, 5
vXR, vWR, vQR, vWR1 = 5, 9, 13, 24
vCS, vSUM, vSQ, vCS1 = 17, 18, 19, 28
vMEAN, vRSTD = 20, 21
vTAG = 22
WF, ACC, XF = 32, 96, 128
QRING, QACC = 64, 112
vXA, vLP0, vXT = 29, 30, 2
AUGA = EXCH
AUGQ = EXCH + 2048
BNC = EXCH + 3072
vLFA, vRFA, vSTA = 12, 63, 62


def capture(fn, *args):
    old, k.L = k.L, []
    vm, lg = k.vm, k.lg
    fn(*args)
    assert (vm, lg) == (k.vm, k.lg)
    got, k.L = k.L, old
    return got


def entry():
    e("s_cmp_ge_u32 s2, 0x100")
    e("s_cbranch_scc1 L_end")
    e(f"s_load_dwordx2 s[{SX}:{SX + 1}], s[0:1], 0")
    e(f"s_load_dwordx2 s[{SW}:{SW + 1}], s[0:1], 8")
    e(f"s_load_dwordx2 s[{SWS}:{SWS + 1}], s[0:1], 80")
    if DEV:
        e(f"{CLK} s[{sSTMP + 2}:{sSTMP + 3}]")
        stamp_names.append("start")
        for i in range(0, NSTAMP, 2):
            e(f"s_mov_b64 s[{sSTAMP0 + i}:{sSTAMP0 + i + 1}], 0")
    e("v_lshrrev_b32 v5, 6, v0")
    e(f"v_and_b32 v{vL}, 63, v0")
    e(f"v_readfirstlane_b32 s{sWv}, v5")
    e(f"s_and_b32 s{sXCD}, s2, 7")
    e(f"s_lshr_b32 s{sJ}, s2, 3")
    e(f"s_and_b32 s{s0}, s{sJ}, 1")
    e(f"s_lshl1_add_u32 s{sRB}, s{sXCD}, s{s0}")
    e(f"s_lshr_b32 s{sHP}, s{sJ}, 1")
    e(f"s_mul_i32 s{sROT}, s{sHP}, {ROT[0]}")
    e(f"s_mul_i32 s{s1}, s{sXCD}, {ROT[1]}")
    e(f"s_mul_i32 s{s0}, s{s0}, {ROT[2]}")
    e(f"s_add_u32 s{sROT}, s{sROT}, s{s0}")
    e(f"s_add_u32 s{sROT}, s{sROT}, s{s1}")
    e(f"s_and_b32 s{sT}, s{sWv}, 3")
    e(f"s_lshr_b32 s{sF}, s{sWv}, 2")
    e(f"s_mov_b32 s{SX + 2}, 0x200000")
    e(f"s_mov_b32 s{SX + 3}, 0x20000")
    e(f"s_mov_b32 s{SW + 2}, 0x180000")
    e(f"s_mov_b32 s{SW + 3}, 0x20000")
    e(f"s_mov_b32 s{SWS + 2}, {WS_SIZE}")
    e(f"s_mov_b32 s{SWS + 3}, 0x20000")


def common_setup():
    e(f"s_load_dwordx2 s[28:29], s[0:1], 16")
    e(f"s_load_dwordx8 s[32:39], s[0:1], 32")
    e(f"s_load_dwordx2 s[{SOUT}:{SOUT + 1}], s[0:1], 64")
    e(f"s_mov_b32 s{SOUT + 2}, 0x200000")
    e(f"s_mov_b32 s{SOUT + 3}, 0x20000")
    e(f"s_mov_b32 s{sONES}, 0x3f803f80")
    e(f"s_mov_b32 s{sABORT}, 0")
    if DEV:
        if "start" not in stamp_names:
            stamp_names.append("start")
        e(f"s_mov_b32 s{sSTAMP0}, s{sSTMP + 2}")


def g_load():
    e(f"s_load_dwordx2 s[{sTAG}:{sTAG + 1}], s[{SWS}:{SWS + 1}], {WS_G}")


def tag_setup(publish):
    e(f"s_getreg_b32 s{sXE}, hwreg(HW_REG_XCC_ID, 0, 4)")
    e(f"s_mul_i32 s{sTAG}, s{sTAG}, 0x9e3779b1")
    e(f"s_add_u32 s{sTAG}, s{sTAG}, 0x7f4a7c15")
    e(f"s_add_u32 s{sTAG + 1}, s{sTAG + 1}, 0x632be5ab")
    e(f"s_xor_b32 s{sXE}, s{sXE}, s{sTAG + 1}")
    e(f"v_mov_b32 v{vTAG}, s{sTAG}")
    e(f"s_lshl_b32 s{s2_}, s{sXCD}, 12")
    e(f"s_add_u32 s{s2_}, s{s2_}, {WS_XT}")
    if publish:
        e(f"v_mov_b32 v{vTAG + 1}, s{sXE}")
        e(f"s_lshl_b32 s{s3_}, s{sJ}, 7")
        e(f"s_add_u32 s{s3_}, s{s3_}, s{s2_}")
        e(f"s_cmp_eq_u32 s{sT}, 0")
        e(f"s_cselect_b32 s{s3_}, s{s3_}, {OOB}")
        e(f"v_mov_b32 v{vXA}, s{s3_}")
        flag_store(vXA, vTAG)
        e("s_nop 1")
    else:
        e(f"s_lshl_b32 s{s3_}, s{sT}, 10")
        e(f"s_add_u32 s{s2_}, s{s2_}, s{s3_}")
        e(f"v_and_b32 v{vXA}, 7, v{vL}")
        e(f"v_lshl_add_u32 v{vXA}, v{vXA}, 7, s{s2_}")
    e(f"v_mov_b32 v{vTAG + 1}, s{sTAG + 1}")
    e(f"s_lshr_b32 s{s2_}, s{sHP}, 1")
    e(f"s_lshl3_add_u32 s{s2_}, s{sXCD}, s{s2_}")
    e(f"s_lshl2_add_u32 s{s2_}, s{s2_}, s{sT}")
    e(f"s_lshl_b32 s{s2_}, s{s2_}, 5")
    e(f"s_add_u32 s{s2_}, s{s2_}, {WS_FKL}")
    e(f"v_and_b32 v{vLP0}, 3, v{vL}")
    e(f"v_lshl_add_u32 v{vLP0}, v{vLP0}, 3, s{s2_}")


def pure_check(tok, vt, ta, tb):
    stub, ret = k.newlabel("Lpu"), k.newlabel("Lpr")
    chk = [f"v_xor_b32 v{ta}, s{sTAG}, v{vt}",
           f"v_xor_b32 v{tb}, s{sTAG + 1}, v{vt + 1}",
           f"v_lshrrev_b32 v{tb}, 4, v{tb}",
           f"v_or_b32 v{ta}, v{ta}, v{tb}",
           f"v_cmp_ne_u32 vcc, 0, v{ta}"]
    k.wait(vm=tok)
    for x in chk:
        e(x)
    e(f"s_cbranch_vccnz {stub}")
    k.label(ret)
    e(f"v_cmp_eq_u32 vcc, s{sXE}, v{vt + 1}")
    e("s_cmp_eq_u64 vcc, -1")
    e(f"s_cselect_b32 s{sPURE}, {0 if IMPURE else 1}, 0")
    e(f"s_lshl2_add_u32 s{s0}, s{sT}, {MISC + 16}")
    e(f"v_mov_b32 v{ta}, s{s0}")
    e(f"v_mov_b32 v{tb}, s{sPURE}")
    k.lds(f"ds_write_b32 v{ta}, v{tb}")
    k.tail += [stub + ":",
               f"buffer_load_dwordx2 v[{vt}:{vt + 1}], v{vXA}, s[{SWS}:{SWS + 3}], 0 offen sc1",
               f"s_add_u32 s{sABORT}, s{sABORT}, 1",
               f"s_cmp_gt_u32 s{sABORT}, 0x20000",
               "s_waitcnt vmcnt(0)",
               f"s_cbranch_scc1 {ret}"] + chk + [f"s_cbranch_vccnz {stub}", f"s_branch {ret}"]


def pure_read(v4):
    e(f"v_mov_b32 v{v4}, {MISC + 16}")
    return k.lds(f"ds_read_b128 {vr(v4, 4)}, v{v4}")


def pure_use(v4):
    e(f"v_and_b32 v{v4}, v{v4}, v{v4 + 1}")
    e(f"v_and_b32 v{v4 + 2}, v{v4 + 2}, v{v4 + 3}")
    e(f"v_and_b32 v{v4}, v{v4}, v{v4 + 2}")
    e(f"v_readfirstlane_b32 s{sPURE}, v{v4}")


def tr_lane(dst_row, dst_col, hshift):
    e(f"v_bfe_u32 v{dst_row}, v{vL}, 2, 2")
    e(f"v_lshrrev_b32 v{dst_col}, 5, v{vL}")
    e(f"v_lshl_add_u32 v{dst_row}, v{dst_col}, {hshift}, v{dst_row}")
    e(f"v_lshrrev_b32 v{dst_col}, 2, v{vL}")
    e(f"v_and_b32 v{dst_col}, 4, v{dst_col}")
    e(f"v_and_or_b32 v{dst_col}, v{vL}, 3, v{dst_col}")
    e(f"v_lshlrev_b32 v{dst_col}, 3, v{dst_col}")


def a_loader():
    e(f"v_lshrrev_b32 v6, 3, v{vL}")
    e(f"v_lshrrev_b32 v7, 4, v{vL}")
    e(f"v_xor_b32 v8, v{vL}, v7")
    e("v_and_b32 v8, 7, v8")
    e("v_lshlrev_b32 v8, 4, v8")
    e(f"v_lshl_add_u32 v{vXD}, v6, 10, v8")
    e(f"v_xor_b32 v{vXD + 1}, 0x2040, v{vXD}")
    e(f"v_lshrrev_b32 v7, 2, v{vL}")
    e("v_and_b32 v7, 4, v7")
    e(f"v_xor_b32 v7, v{vL}, v7")
    e("v_and_b32 v7, 7, v7")
    e("v_lshlrev_b32 v7, 4, v7")
    e("v_mul_u32_u24 v6, 0xc00, v6")
    e(f"v_add_u32 v{vWD}, v6, v7")
    e(f"s_lshl2_add_u32 s{sXB}, s{sRB}, s{sT}")
    e(f"s_lshl_b32 s{sXB}, s{sXB}, 15")
    e(f"s_and_b32 s{s0}, s{sHP}, 1")
    e(f"s_lshr_b32 s{s1}, s{sHP}, 1")
    e(f"s_lshl3_add_u32 s{s0}, s{s0}, s{s1}")
    e(f"s_lshl_b32 s{s0}, s{s0}, 7")
    e(f"s_mul_i32 s{s1}, s{sT}, 0xc000")
    e(f"s_add_u32 s{s0}, s{s0}, s{s1}")
    e(f"s_add_u32 s{sWB}, s{s0}, 0x400")
    e(f"s_lshl_b32 s{s6_}, s{sT}, 11")
    e(f"s_lshl_b32 s{s7_}, s{sT}, 12")
    e("s_waitcnt lgkmcnt(0)")
    if ONLY:
        stamp("karg")

    def chunk(i):
        e(f"s_add_u32 s{s0}, s{sROT}, {i}")
        e(f"s_and_b32 s{s0}, s{s0}, 7")

    def w_issue(i):
        chunk(i)
        e(f"s_mul_i32 s{s0}, s{s0}, 0x30000")
        e(f"s_add_u32 m0, s{s6_}, {WRING + (i & 3) * 8192}")
        e(f"s_add_u32 s{s0}, s{s0}, s{sWB}")
        k.vmem(f"buffer_load_dwordx4 v{vWD}, s[{SW}:{SW + 3}], s{s0} offen lds")
        e(f"s_add_u32 m0, s{s6_}, {WRING + (i & 3) * 8192 + 1024}")
        e(f"s_add_u32 s{s0}, s{s0}, 0x6000")
        return k.vmem(f"buffer_load_dwordx4 v{vWD}, s[{SW}:{SW + 3}], s{s0} offen lds")

    def x_issue(i):
        chunk(i)
        e(f"s_lshl_b32 s{s0}, s{s0}, 7")
        tok = None
        for q in range(4):
            e(f"s_add_u32 m0, s{s7_}, {XRING + (i & 3) * 16384 + q * 1024}")
            if q == 0:
                e(f"s_add_u32 s{s0}, s{s0}, s{sXB}")
            if q == 2:
                e(f"s_add_u32 s{s0}, s{s0}, 0x4000")
            tok = k.vmem(f"buffer_load_dwordx4 v{vXD + (q & 1)}, s[{SX}:{SX + 3}], s{s0} offen lds")
        return tok

    def wq_issue(half, qs=range(4)):
        e(f"s_lshl1_add_u32 s{s0}, s{sT}, s{sROT}")
        e(f"s_add_u32 s{s0}, s{s0}, {half}")
        e(f"s_and_b32 s{s0}, s{s0}, 7")
        e(f"s_mul_i32 s{s0}, s{s0}, 0x30000")
        e(f"s_lshl_b32 s{s1}, s{sHP}, 6")
        e(f"s_add_u32 s{s0}, s{s0}, s{s1}")
        e(f"s_lshl_b32 s{s1}, s{sT}, 13")
        tok = None
        for q in qs:
            e(f"s_add_u32 m0, s{s1}, {WQ + half * 4096 + q * 1024}")
            e(f"s_add_u32 s{s2_}, s{s0}, {q * 0xc000}")
            tok = k.vmem(f"buffer_load_dwordx4 v{vQD}, s[{SW}:{SW + 3}], s{s2_} offen lds")
        return tok

    xt = {}
    g_load()
    w_issue(0)
    xt[0] = x_issue(0)
    if ONLY:
        stamp("iss0")
    w_issue(1)
    common_setup()
    e(f"v_lshrrev_b32 v6, 2, v{vL}")
    e("v_mul_u32_u24 v6, 0xc00, v6")
    e(f"v_and_b32 v7, 3, v{vL}")
    e(f"v_lshl_add_u32 v{vQD}, v7, 4, v6")
    e(f"v_mov_b32 v6, {MISC}")
    e("v_mov_b32 v7, 0")
    e("ds_write_b32 v6, v7")
    k.wait(lg="all")
    tag_setup(False)
    tr_lane(6, 7, 3)
    e("v_lshl_add_u32 v6, v6, 6, v7")
    e(f"s_lshl_b32 s{s0}, s{sT}, 13")
    e(f"s_add_u32 s{s0}, s{s0}, {WQ}")
    e(f"v_add_u32 v6, s{s0}, v6")
    e(f"v_mov_b32 v{vCS}, 0")
    e(f"s_lshl_b32 s{s0}, s{sT}, 2")
    e(f"s_add_u32 s{s0}, s{s0}, {AUGQ}")
    e(f"v_lshl_add_u32 v60, v{vL}, 4, s{s0}")
    zero_o()
    xt[1] = x_issue(1)
    w_issue(2)
    if ONLY:
        stamp("iss1")
    for i in range(8):
        k.wait(vm=xt[i])
        if ONLY and i == 0:
            stamp("x0_landed")
        e("s_barrier")
        if ONLY:
            stamp(f"a{i}_bar")
        if i + 2 < 8:
            xt[i + 2] = x_issue(i + 2)
        if i + 3 < 8:
            w_issue(i + 3)
        if i == 5:
            apoll_issue(vLP0, 8)
            ttok = apoll_issue(vXA, 8)
            wq_issue(0, (0,))
        if i == 6:
            wq_issue(0, (1, 2, 3))
    wq = wq_issue(1)
    pure_check(ttok, 8, 10, 11)
    k.wait(lg="all")
    e("s_barrier")
    stamp("a_loop")
    pure_read(8)
    k.wait(vm=wq)
    for i in range(8):
        k.lds(f"ds_read_b64_tr_b16 {vr(QRING + 4 * i, 2)}, v6 offset:{i * 1024}")
        k.lds(f"ds_read_b64_tr_b16 {vr(QRING + 4 * i + 2, 2)}, v6 offset:{i * 1024 + 256}")
    k.wait(lg="all")
    for r in range(32):
        e(f"v_dot2c_f32_bf16 v{vCS}, s{sONES}, v{QRING + r}")
    hilo(vCS, vCS, 61)
    pure_use(8)
    k.lds(f"ds_write_b32 v60, v{vCS}")
    k.wait(lg="all")
    if ONLY:
        stamp("e_st")
    e("s_barrier")
    stamp("kv_stored")
    attn_setup()
    q_addrs()
    if ONLY:
        stamp("q_lflag")
    ptok = apoll_issue(vLP, vPT)
    apoll_check(ptok, vLP, vPT, "kl1")
    if ONLY:
        stamp("q_seen")
    kv_issue(0)
    kt = kv_issue(1)
    e("s_barrier")
    stamp("q_done")
    q_read()
    k.wait(vm=kt)


def a_compute_setup():
    e(f"s_getpc_b64 s[{ST}:{ST + 1}]")
    k.label("L_pc")
    e(f"s_mov_b32 s{ST + 2}, L_code_end-L_pc")
    e(f"s_mov_b32 s{ST + 3}, 0x20000")
    e(f"s_lshl2_add_u32 s{s0}, s{sJ}, s{sT}")
    e(f"s_lshl_b32 s{s0}, s{s0}, 9")
    e(f"v_lshlrev_b32 v2, 3, v{vL}")
    k.vmem(f"buffer_load_dword v3, v2, s[{ST}:{ST + 3}], s{s0} offen")
    e("s_waitcnt lgkmcnt(0)")
    if ONLY:
        stamp("karg")
    if ONLY:
        stamp("iss0")
    g_load()
    common_setup()
    e(f"v_and_b32 v32, 31, v{vL}")
    e(f"v_lshrrev_b32 v33, 5, v{vL}")
    e("v_bfe_u32 v34, v32, 1, 3")
    e("v_xor_b32 v34, v34, v33")
    e(f"s_lshl_b32 s{s1}, s{sT}, 1")
    e(f"v_xor_b32 v34, s{s1}, v34")
    e("v_lshlrev_b32 v34, 4, v34")
    e(f"s_lshl_b32 s{s1}, s{sT}, 12")
    e(f"v_lshl_add_u32 v35, v32, 7, s{s1}")
    e(f"v_add_u32 v{vXR}, v34, v35")
    for ks in range(1, 4):
        e(f"v_xor_b32 v{vXR + ks}, {ks * 32}, v{vXR}")
    tr_lane(34, 35, 3)
    e(f"v_bfe_u32 v36, v{vL}, 3, 1")
    e("v_lshl_add_u32 v36, v36, 6, v35")
    e("v_lshl_add_u32 v36, v34, 7, v36")
    e(f"s_lshl_b32 s{s1}, s{sT}, 11")
    e(f"s_add_u32 s{s1}, s{s1}, {WRING}")
    e(f"v_add_u32 v{vWR}, s{s1}, v36")
    for ks in range(1, 4):
        e(f"v_xor_b32 v{vWR + ks}, {ks * 2048}, v{vWR}")
    for ks in range(4):
        e(f"v_xor_b32 v{vWR1 + ks}, 64, v{vWR + ks}")
    e("v_lshl_add_u32 v36, v34, 6, v35")
    e(f"s_lshl_b32 s{s1}, s{sT}, 10")
    e(f"s_add_u32 s{s1}, s{s1}, {WQ}")
    e(f"v_add_u32 v{vQR}, s{s1}, v36")
    for ks in range(1, 4):
        e(f"v_xor_b32 v{vQR + ks}, {ks * 1024}, v{vQR}")
    for r in (vCS, vCS1, vSUM, vSQ):
        e(f"v_mov_b32 v{r}, 0")
    e(f"s_lshl_b32 s{s0}, s{sT}, 2")
    e(f"s_add_u32 s{s0}, s{s0}, {AUGA}")
    e(f"v_lshl_add_u32 v31, v{vL}, 4, s{s0}")
    if ONLY:
        stamp("iss1")
    k.wait(lg="all")
    if ONLY:
        stamp("x0_landed")
    tag_setup(True)
    e(f"s_lshr_b32 s{s0}, s{sHP}, 1")
    e(f"s_lshl2_add_u32 s{s1}, s{sRB}, s{sT}")
    e(f"s_lshl_b32 s{s2_}, s{s0}, 19")
    e(f"s_lshl_b32 s{s1}, s{s1}, 11")
    e(f"s_add_u32 s{s2_}, s{s2_}, s{s1}")
    e(f"s_add_u32 s{s4_}, s{s2_}, {WS_KVL}")
    e(f"s_add_u32 s{s2_}, s{s2_}, {WS_KV}")
    e(f"s_lshl2_add_u32 s{s0}, s{s0}, s{sT}")
    e(f"s_and_b32 s{s3_}, s{sHP}, 1")
    e(f"s_lshl1_add_u32 s{s1}, s{s0}, s{s3_}")
    e(f"s_lshl4_add_u32 s{s1}, s{s1}, s{sRB}")
    e(f"s_lshl_b32 s{s1}, s{s1}, 7")
    e(f"s_add_u32 s{s6_}, s{s1}, {WS_FKV}")
    e(f"s_lshl_b32 s{s1}, s{sXCD}, 5")
    e(f"s_add_u32 s{s0}, s{s0}, s{s1}")
    e(f"s_and_b32 s{s1}, s{sJ}, 1")
    e(f"s_lshl1_add_u32 s{s0}, s{s0}, s{s1}")
    e(f"s_lshl1_add_u32 s{s0}, s{s0}, s{s3_}")
    e(f"s_lshl3_add_u32 s{s5_}, s{s0}, {WS_FKL}")


def a_compute(typ, merge_vm):
    k.vm = merge_vm

    def wreg(i, ks, ft):
        return WF + 32 * (i & 1) + 8 * ks + 4 * ft

    def reads(i, ks, ft):
        slot = i & 3
        if ft == 0:
            k.lds(f"ds_read_b128 {vr(XF + 16 * i + 4 * ks, 4)}, v{vXR + ks} offset:{slot * 16384}")
        w = wreg(i, ks, ft)
        a = (vWR, vWR1)[ft] + ks
        k.lds(f"ds_read_b64_tr_b16 {vr(w, 2)}, v{a} offset:{slot * 8192}")
        k.lds(f"ds_read_b64_tr_b16 {vr(w + 2, 2)}, v{a} offset:{slot * 8192 + 512}")

    def cdots(i):
        for r in range(4):
            e(f"v_dot2c_f32_bf16 v{vCS}, s{sONES}, v{wreg(i, 0, 0) + r}")
            e(f"v_dot2c_f32_bf16 v{vCS1}, s{sONES}, v{wreg(i, 0, 1) + r}")

    def xdots(i):
        for r in range(16):
            x = XF + 16 * i + r
            e(f"v_dot2c_f32_bf16 v{vSUM}, s{sONES}, v{x}")
            e(f"v_dot2c_f32_bf16 v{vSQ}, v{x}, v{x}")

    def mf(ft, w, x, first=False):
        d = vr(ACC + 16 * ft, 16)
        a, b = (w, x) if typ == 0 else (x, w)
        e(f"v_mfma_f32_32x32x16_bf16 {d}, {vr(a, 4)}, {vr(b, 4)}, {'0' if first else d}")

    def mfs(i, ks, ft):
        mf(ft, wreg(i, ks, ft), XF + 16 * i + 4 * ks, i == 0 and ks == 0)

    xt_tok = None
    for i in range(8):
        k.wait(lg="all")
        e("s_barrier")
        if ONLY:
            stamp(f"a{i}_bar")
        for ks in range(4):
            for ft in range(2):
                if i > 0:
                    mfs(i - 1, ks, ft)
                reads(i, ks, ft)
        if i > 0:
            cdots(i - 1)
            xdots(i - 1)
    T = WF
    k.wait(vm="all", lg="all")
    cdots(7)
    xdots(7)
    mfs(7, 0, 0)
    hilo(vCS, vCS, T)
    k.lds(f"ds_write_b32 v31, v{vCS}")
    mfs(7, 0, 1)
    hilo(vCS1, vCS1, T)
    k.lds(f"ds_write_b32 v31, v{vCS1} offset:1024")
    mfs(7, 1, 0)
    e(f"v_mov_b32 v{T}, v{vSUM}")
    e(f"v_mov_b32 v{T + 1}, v{vSQ}")
    e(f"v_lshlrev_b32 v{T + 2}, 4, v{vL}")
    e(f"v_add_u32 v{T + 2}, {AUGA}, v{T + 2}")
    k.wait(lg="all")
    e("s_barrier")
    stamp("a_loop")
    mfs(7, 1, 1)
    pure_read(24)
    k.lds(f"ds_read_b128 {vr(T + 4, 4)}, v{T + 2}")
    ta = k.lds(f"ds_read_b128 {vr(T + 8, 4)}, v{T + 2} offset:1024")
    e(f"v_permlane32_swap_b32 v{T}, v{vSUM}")
    e(f"v_permlane32_swap_b32 v{T + 1}, v{vSQ}")
    e(f"v_add_f32 v{vSUM}, v{T}, v{vSUM}")
    e(f"v_add_f32 v{vSQ}, v{T + 1}, v{vSQ}")
    mfs(7, 2, 0)
    e(f"v_mul_f32 v{vSUM}, 0x3b000000, v{vSUM}")
    for r in range(4):
        e(f"v_cvt_pk_bf16_f32 v{T + 12 + r}, -v{vSUM}, -v{vSUM}")
    rs = capture(ln_rstd, vSUM, vSQ, T + 3, vRSTD)
    mfs(7, 2, 1)
    for x in rs[:6]:
        e(x)
    mfs(7, 3, 0)
    for x in rs[6:]:
        e(x)
    k.wait(lg=ta)
    mf(0, T + 4, T + 12)
    if typ == 1:
        e(f"s_lshl_b32 s{s0}, s{sT}, 7")
        e(f"s_add_u32 s{s0}, s{s0}, {BNC}")
        e(f"v_and_b32 v{T}, 31, v{vL}")
        e(f"v_lshrrev_b32 v{T + 1}, 5, v{vL}")
        e(f"v_lshl_add_u32 v{T}, v{T}, 2, s{s0}")
        e(f"v_lshl_add_u32 v{T + 2}, v{T + 1}, 4, s{s0}")
        k.lds(f"ds_write_b32 v{T}, v{vRSTD}")
        for j in range(4):
            k.lds(f"ds_read_b128 {vr(T + 16 + 4 * j, 4)}, v{T + 2} offset:{32 * j}")
    mfs(7, 3, 1)
    e(f"v_mov_b32 v{vMEAN}, v{T + 12}")
    e(f"v_mov_b32 v{vLFA}, s{s5_}")
    mf(1, T + 8, T + 12)
    if typ == 0:
        e(f"v_lshrrev_b32 v{T}, 1, v{vL}")
        e(f"v_xor_b32 v{T}, v{T}, v{vL}")
        e(f"v_and_b32 v{T}, 4, v{T}")
        e(f"v_mul_u32_u24 v{T}, 3, v{T}")
        e(f"v_xor_b32 v{T}, v{T}, v{vL}")
        e(f"v_lshlrev_b32 v4, 4, v{T}")
    else:
        e(f"v_and_b32 v{T}, 15, v{vL}")
        e(f"v_lshl_add_u32 v{T}, v{T + 1}, 4, v{T}")
        e(f"v_lshlrev_b32 v{T}, 4, v{T}")
        e(f"v_bfe_u32 v{T + 1}, v{vL}, 4, 1")
        e(f"v_lshl_add_u32 v4, v{T + 1}, 17, v{T}")
    if ONLY:
        stamp("e_pre")
    pure_use(24)
    if ONLY:
        stamp("e_pure")
    k.wait(lg="all")
    U = WF + 32

    def st(ft, base, tmp):
        d = ACC + 8 * ft
        if typ == 0:
            return [f"s_add_u32 s{tmp}, s{base}, {ft * 0x40000}",
                    f"buffer_store_dwordx4 {vr(d, 4)}, v4, s[{SWS}:{SWS + 3}], s{tmp} offen",
                    f"s_add_u32 s{tmp}, s{base}, {ft * 0x40000 + 0x20000}",
                    f"buffer_store_dwordx4 {vr(d + 4, 4)}, v4, s[{SWS}:{SWS + 3}], s{tmp} offen"]
        return [f"s_add_u32 s{tmp}, s{base}, {ft * 0x40000}",
                f"buffer_store_dwordx4 {vr(d, 4)}, v4, s[{SWS}:{SWS + 3}], s{tmp} offen offset:1024",
                f"buffer_store_dwordx4 {vr(d + 4, 4)}, v4, s[{SWS}:{SWS + 3}], s{tmp} offen offset:1536"]
    for ft in range(2):
        for r in range(0, 16, 2):
            if typ == 0:
                e(f"v_pk_mul_f32 {vr(U + r, 2)}, {vr(ACC + 16 * ft + r, 2)}, {vr(vMEAN, 2)} op_sel:[0,1] op_sel_hi:[1,1]")
            else:
                e(f"v_pk_mul_f32 {vr(U + r, 2)}, {vr(ACC + 16 * ft + r, 2)}, {vr(T + 16 + r, 2)}")
        for r in range(8):
            e(f"v_cvt_pk_bf16_f32 v{ACC + 8 * ft + r}, v{U + 2 * r}, v{U + 2 * r + 1}")
        local_stores(st(ft, s4_, s0))
    e(f"v_mov_b32 v{vSTA}, v4")
    e(f"v_mov_b32 v{vRFA}, s{s6_}")
    if typ == 0:
        e(f"s_add_u32 s{s3_}, s{s2_}, 0x20000")
    else:
        e(f"s_add_u32 s{s3_}, s{s2_}, 1536")
        e(f"s_add_u32 s{s2_}, s{s2_}, 1024")
    e(f"s_add_u32 s{s4_}, s{s2_}, 0x40000")
    e(f"s_add_u32 s{s5_}, s{s3_}, 0x40000")
    if ONLY:
        stamp("e_st")


KVB, QR, SB, OA, WOR = 24, 96, 64, 128, 192
vIDX, vKA, vVA, vFA, vPF, vLP = 2, 3, 4, 5, 6, 7
vPT = 8
vXRES = 16
NBUF = 3
PRIO = [int(x) for x in ([a.split('=')[1] for a in sys.argv if a.startswith('--prio=')] + ['16,57,63'])[0].split(',')]


def attn_setup():
    e(f"v_mov_b32 v{vLP}, v{vLP0}")
    e(f"v_mov_b32 v{vIDX}, 0xdddd")
    e(f"v_lshlrev_b32 v{vKA}, 4, v{vL}")
    e(f"v_and_b32 v10, 15, v{vL}")
    e(f"v_lshrrev_b32 v11, 5, v{vL}")
    e("v_lshl_add_u32 v11, v11, 4, v10")
    e(f"v_lshlrev_b32 v{vVA}, 4, v11")
    e(f"s_lshl_b32 s{sXB}, s{sXCD}, 1")
    e(f"v_add_u32 v10, s{sXB}, v10")
    e("v_and_b32 v10, 15, v10")
    e(f"v_and_b32 v11, 16, v{vL}")
    e("v_add_u32 v10, v10, v11")
    e(f"s_lshr_b32 s{s0}, s{sHP}, 1")
    e(f"s_lshl2_add_u32 s{s0}, s{s0}, s{sT}")
    e(f"s_lshl_b32 s{s0}, s{s0}, 12")
    e(f"s_add_u32 s{sFKB}, s{s0}, {WS_FKV}")
    e(f"v_lshl_add_u32 v{vFA}, v10, 7, s{sFKB}")
    e(f"s_lshl1_add_u32 s{s0}, s{sHP}, s{sF}")
    e(f"s_lshl_b32 s{s0}, s{s0}, 17")
    e(f"s_lshl_b32 s{s1}, s{sT}, 11")
    e(f"s_add_u32 s{s0}, s{s0}, s{s1}")
    e(f"s_add_u32 s{sKVB}, s{s0}, {WS_KV}")
    e(f"s_mov_b32 s{sVMASK}, 0xffff")
    e(f"s_mov_b32 s{sVMASK + 1}, 0xffff")
    e(f"s_mov_b32 s{sMASK}, 0")
    e(f"v_and_b32 v10, 27, v{vL}")
    e("v_cmp_eq_u32 vcc, 16, v10")
    e(f"v_mov_b32 v11, s{sONES}")
    e("v_cndmask_b32 v10, 0, v11, vcc")
    for b in range(NBUF):
        for r in range(4, 12):
            e(f"v_mov_b32 v{KVB + 12 * b + r}, v10")


def kv_issue(s):
    b = KVB + 12 * (s % NBUF)
    if s >= 6:
        stub = k.newlabel("Lkvs")
        ret = k.newlabel("Lkvr")
        e(f"s_bitcmp1_b32 s{sMASK}, {s}")
        e(f"s_cbranch_scc0 {stub}")
        k.label(ret)
        k.tail += [f"{stub}:", f"s_mov_b32 s{s6_}, {s}", f"s_call_b64 s[{sRET}:{sRET + 1}], L_kvpoll", f"s_branch {ret}"]
    if s >= 2:
        e(f"s_add_u32 s{s0}, s{sXB}, {s}")
        e(f"s_and_b32 s{s0}, s{s0}, 15")
        e(f"s_lshl_b32 s{s0}, s{s0}, 13")
    else:
        e(f"s_xor_b32 s{s0}, s{sRB}, {s}")
        e(f"s_lshl_b32 s{s0}, s{s0}, 13")
        e(f"s_add_u32 s{s0}, s{s0}, {WS_KVL - WS_KV}")
    e(f"s_add_u32 s{s0}, s{s0}, s{sKVB}")
    k.vmem(f"buffer_load_dwordx4 {vr(b, 4)}, v{vKA}, s[{SWS}:{SWS + 3}], s{s0} offen sc1")
    e(f"s_mov_b64 exec, s[{sVMASK}:{sVMASK + 1}]")
    k.vmem(f"buffer_load_dwordx4 {vr(b + 4, 4)}, v{vVA}, s[{SWS}:{SWS + 3}], s{s0} offen offset:1024 sc1")
    tok = k.vmem(f"buffer_load_dwordx4 {vr(b + 8, 4)}, v{vVA}, s[{SWS}:{SWS + 3}], s{s0} offen offset:1536 sc1")
    e("s_mov_b64 exec, -1")
    return tok


def kv_mask():
    e(f"s_lshr_b32 s{sMASK}, vcc_lo, 16")
    e(f"s_and_b32 s{sMASK}, s{sMASK}, vcc_lo")


def kvpoll_routine():
    k.label("L_kvpoll")

    def cond():
        kv_mask()
        e(f"s_bitcmp1_b32 s{sMASK}, s{s6_}")
    poll(vFA, vPT, cond, "kv")
    e(f"s_setpc_b64 s[{sRET}:{sRET + 1}]")


def q_pass():
    LA = 6
    toks = {}

    def rd(n):
        w = QRING + 4 * (n & 7)
        if n == 32:
            toks[n] = k.lds(f"ds_read_b128 {vr(w, 4)}, v61")
            return
        i, ks = n >> 2, n & 3
        k.lds(f"ds_read_b64_tr_b16 {vr(w, 2)}, v{vQR + ks} offset:{i * 4096}")
        toks[n] = k.lds(f"ds_read_b64_tr_b16 {vr(w + 2, 2)}, v{vQR + ks} offset:{i * 4096 + 256}")
    ltok = k.vm

    def side():
        attn_setup()
        for r in range(4):
            e(f"v_mov_b32 v{XF + r}, v{vMEAN}")
        e(f"v_mul_f32 v{vRSTD}, 0x3eb8aa3b, v{vRSTD}")
        e(f"s_lshl_b32 s{s0}, s{sT}, 10")
        e(f"s_add_u32 s{s0}, s{s0}, {QF}")
        e(f"v_lshl_add_u32 v60, v{vL}, 4, s{s0}")
        e(f"v_add_u32 v61, {AUGQ}, v{vKA}")
    fill = capture(side)
    for n in range(LA):
        rd(n)
    rtok = None
    for n in range(33):
        k.wait(lg=toks[n])
        w = QRING + 4 * (n & 7)
        c = "0" if n == 0 else vr(QACC, 16)
        e(f"v_mfma_f32_32x32x16_bf16 {vr(QACC, 16)}, {vr(w, 4)}, {vr(XF + 4 * (n & 31), 4)}, {c}")
        if n in RST:
            j = RST.index(n)
            rtok = k.vmem(f"buffer_store_dwordx4 {vr(ACC + 4 * j, 4)}, v{vSTA}, s[{SWS}:{SWS + 3}], s{s2_ + j} offen sc1")
        if n == LFN:
            k.wait(vm=ltok)
            flag_store(vLFA, vTAG, local=True)
            if ONLY:
                stamp("q_lflag")
        elif n not in RST or n > 20:
            for x in fill[:3]:
                e(x)
            fill = fill[3:]
        if n + LA <= 32:
            assert n + LA < 32 or not fill
            rd(n + LA)
    if ONLY:
        stamp("q_mf")
    ptok = apoll_issue(vLP, vPT)
    if RFL == 0:
        k.wait(vm=rtok)
        flag_store(vRFA, vTAG)
    q_addrs()
    for r in range(0, 16, 2):
        e(f"v_pk_mul_f32 {vr(QRING + r, 2)}, {vr(QACC + r, 2)}, {vr(vMEAN, 2)} op_sel:[0,1] op_sel_hi:[1,1]")
    for r in range(8):
        e(f"v_cvt_pk_bf16_f32 v{QACC + r}, v{QRING + 2 * r}, v{QRING + 2 * r + 1}")
        if r == 3:
            k.lds(f"ds_write_b128 v60, {vr(QACC, 4)}")
    k.lds(f"ds_write_b128 v60, {vr(QACC + 4, 4)} offset:4096")
    k.wait(lg="all")
    e("s_barrier")
    stamp("q_done")
    apoll_check(ptok, vLP, vPT, "kl0")
    if ONLY:
        stamp("q_seen")
    kv_issue(0)
    kt = kv_issue(1)
    if RFL == 1:
        flag_store(vRFA, vTAG)
    q_read()
    zero_o()
    k.wait(vm=kt)


def srf_loads(steps):
    L = []
    for i, st_ in enumerate(steps):
        L += [f"s_add_u32 s{s0}, s{sXB}, {st_}",
              f"s_and_b32 s{s0}, s{s0}, 15",
              f"s_lshl_b32 s{s0}, s{s0}, 7",
              f"s_add_u32 s{s0}, s{s0}, s{sFKB}",
              f"s_load_dwordx2 s[{sRF + 4 * i}:{sRF + 4 * i + 1}], s[{SWS}:{SWS + 1}], s{s0} glc",
              f"s_add_u32 s{s0}, s{s0}, 0x800",
              f"s_load_dwordx2 s[{sRF + 4 * i + 2}:{sRF + 4 * i + 3}], s[{SWS}:{SWS + 1}], s{s0} glc"]
    return L


def srf_issue(steps):
    for x in srf_loads(steps):
        e(x)


def srf_check(steps):
    stub, ret = k.newlabel("Lsf"), k.newlabel("Lsfr")
    chk = ["s_waitcnt lgkmcnt(0)"]
    for i in range(4):
        chk.append(f"s_xor_b64 s[{sRF + 2 * i}:{sRF + 2 * i + 1}], s[{sRF + 2 * i}:{sRF + 2 * i + 1}], s[{sTAG}:{sTAG + 1}]")
    chk.append(f"s_or_b64 s[{sRF}:{sRF + 1}], s[{sRF}:{sRF + 1}], s[{sRF + 2}:{sRF + 3}]")
    chk.append(f"s_or_b64 s[{sRF + 4}:{sRF + 5}], s[{sRF + 4}:{sRF + 5}], s[{sRF + 6}:{sRF + 7}]")
    chk.append(f"s_or_b64 s[{sRF}:{sRF + 1}], s[{sRF}:{sRF + 1}], s[{sRF + 4}:{sRF + 5}]")
    for x in chk:
        e(x)
    e(f"s_cbranch_scc1 {stub}")
    k.label(ret)
    k.tail += [stub + ":", f"s_add_u32 s{sABORT}, s{sABORT}, 1", f"s_cmp_gt_u32 s{sABORT}, 0x20000",
               f"s_cbranch_scc1 {ret}"] + srf_loads(steps) + chk + [f"s_cbranch_scc1 {stub}", f"s_branch {ret}"]


def q_addrs():
    e(f"s_lshl_b32 s{s1}, s{sF}, 12")
    e(f"s_add_u32 s{s1}, s{s1}, {QF}")
    for i in range(4):
        e(f"s_add_u32 s{s0}, s{sT}, {i + 1}")
        e(f"s_and_b32 s{s0}, s{s0}, 3")
        e(f"s_lshl_b32 s{s0}, s{s0}, 10")
        e(f"s_add_u32 s{s0}, s{s0}, s{s1}")
        e(f"v_add_u32 v{13 + i}, s{s0}, v{vKA}")


def q_read():
    for i in range(4):
        k.lds(f"ds_read_b128 {vr(QR + 4 * i, 4)}, v{13 + i}")


def zero_o():
    for r in range(4):
        e(f"v_mov_b32 v{SB + r}, 0")
    for q in range(4):
        e(f"v_mfma_f32_32x32x16_bf16 {vr(OA + 16 * q, 16)}, {vr(SB, 4)}, {vr(SB, 4)}, 0")


vRW, vRR, vOFA = 10, 13, 14


def red_setup():
    e(f"s_mul_i32 s{s1}, s{sF}, {12 * 2304}")
    e(f"s_add_u32 s{s1}, s{s1}, {RED}")
    for i in range(3):
        e(f"s_add_u32 s{s0}, s{sT}, {i + 1}")
        e(f"s_and_b32 s{s0}, s{s0}, 3")
        e(f"s_mul_i32 s{s0}, s{s0}, {3 * 2304}")
        e(f"s_add_u32 s{s0}, s{s0}, s{s1}")
        e(f"s_add_u32 s{s0}, s{s0}, {i * 2304}")
        e(f"v_add_u32 v{vRW + i}, s{s0}, v{vKA}")
    e(f"s_mul_i32 s{s0}, s{sT}, {3 * 2304}")
    e(f"s_add_u32 s{s0}, s{s0}, s{s1}")
    e(f"v_add_u32 v{vRR}, s{s0}, v{vKA}")
    e(f"v_mul_u32_u24 v15, 12, v{vL}")


def red_send(q):
    o = OA + 16 * q
    k.lds(f"ds_write_b128 v{vRW + q}, {vr(o, 4)}")
    k.lds(f"ds_write_b128 v{vRW + q}, {vr(o + 4, 4)} offset:1024")
    e(f"v_sub_u32 v{o + 9}, v{vRW + q}, v15")
    k.lds(f"ds_write_b32 v{o + 9}, v{o + 8} offset:2048")


def attention(toks, extras):
    toks = dict(toks)

    def qk(ti):
        s, q = ti >> 2, ti & 3
        b = KVB + 12 * (s % NBUF)
        d = SB + 16 * (ti & 1)
        return f"v_mfma_f32_32x32x16_bf16 {vr(d, 16)}, {vr(b, 4)}, {vr(QR + 4 * q, 4)}, 0"

    def pv(ti, half):
        s, q = ti >> 2, ti & 3
        b = KVB + 12 * (s % NBUF) + 4 + 4 * half
        p = SB + 16 * (ti & 1) + 8 * half
        return f"v_smfmac_f32_32x32x32_bf16 {vr(OA + 16 * q, 16)}, {vr(b, 4)}, {vr(p, 8)}, v{vIDX}"

    e("s_setprio 3")
    k.wait(lg="all")
    stamp("kv_landed")
    e(qk(0))
    st = {}
    for ti in range(64):
        s, q = ti >> 2, ti & 3
        d = SB + 16 * (ti & 1)
        E = lambda j: e(f"v_exp_f32 v{d + j}, v{d + j}")
        if ONLY and q == 0 and s > 0:
            stamp(f"s{s}")
        if ti == PRIO[0]:
            e("s_setprio 2")
        if ti == PRIO[1]:
            e("s_setprio 1")
        if ti == PRIO[2]:
            e("s_setprio 0")
        E(0); E(1)
        if ti > 0:
            e(pv(ti - 1, 1))
        E(2)
        if (s, q) == (0, 2):
            srf_issue((2, 3))
        if (s, q) == (1, 2):
            srf_check((2, 3))
            toks[2] = kv_issue(2)
            toks[3] = kv_issue(3)
            srf_issue((4, 5))
        if (s, q) == (2, 0):
            srf_check((4, 5))
        if (s, q) == (4, 0):
            k.wait(vm=st["r"])
            e(f"v_cmp_eq_u64 vcc, s[{sTAG}:{sTAG + 1}], v[{vPT}:{vPT + 1}]")
            kv_mask()
        if q == 0 and 2 <= s < 14:
            toks[s + 2] = kv_issue(s + 2)
        if (s, q) == (2, 1):
            st["r"] = apoll_issue(vFA, vPT)
        for fn in extras.get((s, q), []):
            fn(toks)
        E(3); E(4)
        if ti + 1 < 64:
            if q == 3 and s > 0:
                k.wait(vm=toks[s + 1])
            e(qk(ti + 1))
        for j in range(5, 10):
            E(j)
        e(pv(ti, 0))
        for j in range(10, 16):
            E(j)
        if s == 15 and q >= 1:
            red_send(q - 1)
    e(pv(63, 1))
    if ONLY:
        stamp("s16")


def range_check():
    o = [OA + 16 * q + 8 for q in range(4)]
    e(f"v_min3_f32 v{SB + 1}, v{o[0]}, v{o[1]}, v{o[2]}")
    e(f"v_add_f32 v{SB + 2}, v{o[0]}, v{o[1]}")
    e(f"v_add_f32 v{SB + 2}, v{SB + 2}, v{o[2]}")
    e(f"v_add_f32 v{SB + 2}, v{SB + 2}, v{o[3]}")
    e(f"v_min_f32 v{SB + 1}, v{SB + 1}, v{o[3]}")
    e(f"v_cmp_nge_f32 vcc, 0x5d800000, v{SB + 2}")
    e(f"s_mov_b64 s[{s0}:{s0 + 1}], vcc")
    e(f"v_cmp_nle_f32 vcc, 0x21800000, v{SB + 1}")
    e(f"s_or_b64 vcc, vcc, s[{s0}:{s0 + 1}]")
    if FORCE_SLOW:
        e("s_mov_b64 vcc, -1")
    e(f"v_mov_b32 v{SB + 3}, {MISC}")
    e(f"v_mov_b32 v{SB + 4}, 1")
    e("s_mov_b64 exec, vcc")
    k.lds(f"ds_write_b32 v{SB + 3}, v{SB + 4}")
    e("s_mov_b64 exec, -1")


def attn_reduce():
    o = OA + 48
    e(f"v_mov_b32 v{SB + 3}, {MISC}")
    e(f"v_sub_u32 v{SB + 5}, v{vRR}, v15")
    k.lds(f"ds_read_b32 v{SB + 4}, v{SB + 3}")
    tl = []
    for i in range(3):
        tl.append(k.lds(f"ds_read_b32 v{SB + 6 + i}, v{SB + 5} offset:{i * 2304 + 2048}"))
    td = []
    for i in range(3):
        k.lds(f"ds_read_b128 {vr(OA + 8 * i, 4)}, v{vRR} offset:{i * 2304}")
        td.append(k.lds(f"ds_read_b128 {vr(OA + 8 * i + 4, 4)}, v{vRR} offset:{i * 2304 + 1024}"))
    e(f"s_lshl2_add_u32 s{s0}, s{sRB}, s{sT}")
    e(f"s_lshl_b32 s{s0}, s{s0}, 5")
    e(f"s_lshl1_add_u32 s{s1}, s{sHP}, s{sF}")
    e(f"s_add_u32 s{s0}, s{s0}, s{s1}")
    e(f"s_lshl3_add_u32 s{s1}, s{s0}, {WS_FO}")
    e(f"v_mov_b32 v{vOFA}, s{s1}")
    e(f"s_lshl_b32 s{s0}, s{s0}, 10")
    e(f"s_add_u32 s{s0}, s{s0}, {WS_O}")
    k.wait(lg=tl[2])
    e(f"v_cmp_ne_u32 vcc, 0, v{SB + 4}")
    e("s_cbranch_vccnz L_slow")
    e(f"v_add_f32 v{SB + 6}, v{SB + 6}, v{SB + 7}")
    e(f"v_add_f32 v{SB + 8}, v{SB + 8}, v{o + 8}")
    e(f"v_add_f32 v{SB + 6}, v{SB + 6}, v{SB + 8}")
    e(f"v_rcp_f32 v{SB + 6}, v{SB + 6}")
    for i in range(3):
        k.wait(lg=td[i])
        for r in range(0, 8, 2):
            e(f"v_pk_add_f32 {vr(o + r, 2)}, {vr(o + r, 2)}, {vr(OA + 8 * i + r, 2)}")
    for r in range(0, 8, 2):
        e(f"v_pk_mul_f32 {vr(o + r, 2)}, {vr(o + r, 2)}, {vr(SB + 6, 2)} op_sel_hi:[1,0]")
    for r in range(4):
        e(f"v_cvt_pk_bf16_f32 v{SB + 12 + r}, v{o + 2 * r}, v{o + 2 * r + 1}")
    return local_stores([f"buffer_store_dwordx4 {vr(SB + 12, 4)}, v{vKA}, s[{SWS}:{SWS + 3}], s{s0} offen"])


def slow_path():
    k.label("L_slow")
    MX = 112
    e("s_waitcnt lgkmcnt(0)")
    e("s_barrier")
    e(f"v_mov_b32 v{SB + 4}, 0")
    e(f"ds_write_b32 v{SB + 3}, v{SB + 4}")
    for b_ in range(2):
        e(f"s_mov_b32 s{s6_}, {b_}")
        e(f"s_call_b64 s[{sRET}:{sRET + 1}], L_kvpoll")
    for q in range(4):
        e(f"v_mov_b32 v{MX + q}, 0xff7fffff")
    b = KVB

    def load(with_v):
        e(f"s_lshl_b32 s{s0}, s{s5_}, 13")
        e(f"s_add_u32 s{s0}, s{s0}, s{sKVB}")
        e(f"buffer_load_dwordx4 {vr(b, 4)}, v{vKA}, s[{SWS}:{SWS + 3}], s{s0} offen sc1")
        if with_v:
            e(f"s_mov_b64 exec, s[{sVMASK}:{sVMASK + 1}]")
            e(f"buffer_load_dwordx4 {vr(b + 4, 4)}, v{vVA}, s[{SWS}:{SWS + 3}], s{s0} offen offset:1024 sc1")
            e(f"buffer_load_dwordx4 {vr(b + 8, 4)}, v{vVA}, s[{SWS}:{SWS + 3}], s{s0} offen offset:1536 sc1")
            e("s_mov_b64 exec, -1")
        e("s_waitcnt vmcnt(0)")
    e(f"s_mov_b32 s{s5_}, 0")
    k.label("L_slow1")
    load(False)
    for q in range(4):
        e(f"v_mfma_f32_32x32x16_bf16 {vr(SB, 16)}, {vr(b, 4)}, {vr(QR + 4 * q, 4)}, 0")
        for r in range(0, 16, 2):
            e(f"v_max3_f32 v{MX + q}, v{MX + q}, v{SB + r}, v{SB + r + 1}")
        e("s_nop 1")
    e(f"s_add_u32 s{s5_}, s{s5_}, 1")
    e(f"s_cmp_lt_u32 s{s5_}, 16")
    e("s_cbranch_scc1 L_slow1")
    e(f"v_and_b32 v{SB + 1}, 31, v{vL}")
    for q in range(4):
        e(f"v_mov_b32 v{SB}, v{MX + q}")
        e(f"v_permlane32_swap_b32 v{SB}, v{MX + q}")
        e(f"v_max_f32 v{MX + q}, v{MX + q}, v{SB}")
        e(f"s_add_u32 s{s0}, s{sT}, {q + 1}")
        e(f"s_and_b32 s{s0}, s{s0}, 3")
        e(f"s_lshl2_add_u32 s{s0}, s{sF}, s{s0}")
        e(f"s_lshl_b32 s{s0}, s{s0}, 9")
        e(f"s_add_u32 s{s0}, s{s0}, {RED}")
        e(f"v_lshl_add_u32 v{MX + 4 + q}, v{SB + 1}, 4, s{s0}")
        e(f"s_lshl_b32 s{s0}, s{sT}, 2")
        e(f"v_add_u32 v{SB + 2}, s{s0}, v{MX + 4 + q}")
        e(f"ds_write_b32 v{SB + 2}, v{MX + q}")
    e("s_waitcnt lgkmcnt(0)")
    e("s_barrier")
    for q in range(4):
        e(f"ds_read_b128 {vr(SB + 4 * q, 4)}, v{MX + 4 + q}")
    e("s_waitcnt lgkmcnt(0)")
    for q in range(4):
        e(f"v_max3_f32 v{MX + q}, v{SB + 4 * q}, v{SB + 4 * q + 1}, v{SB + 4 * q + 2}")
        e(f"v_max_f32 v{MX + q}, v{MX + q}, v{SB + 4 * q + 3}")
    e("s_barrier")
    zero_o()
    e(f"s_mov_b32 s{s5_}, 0")
    k.label("L_slow2")
    load(True)
    for q in range(4):
        e(f"v_mfma_f32_32x32x16_bf16 {vr(SB, 16)}, {vr(b, 4)}, {vr(QR + 4 * q, 4)}, 0")
        for r in range(16):
            e(f"v_sub_f32 v{SB + r}, v{SB + r}, v{MX + q}")
        for r in range(16):
            e(f"v_exp_f32 v{SB + r}, v{SB + r}")
        e(f"v_smfmac_f32_32x32x32_bf16 {vr(OA + 16 * q, 16)}, {vr(b + 4, 4)}, {vr(SB, 8)}, v{vIDX}")
        e(f"v_smfmac_f32_32x32x32_bf16 {vr(OA + 16 * q, 16)}, {vr(b + 8, 4)}, {vr(SB + 8, 8)}, v{vIDX}")
    e("s_nop 15")
    e(f"s_add_u32 s{s5_}, s{s5_}, 1")
    e(f"s_cmp_lt_u32 s{s5_}, 16")
    e("s_cbranch_scc1 L_slow2")
    for q in range(3):
        red_send(q)
    e("s_waitcnt lgkmcnt(0)")
    e("s_barrier")
    e("s_branch L_reduce")


def finish():
    k.label("L_finish")
    if STOP is None:
        e(f"s_or_b32 s{s0}, s2, s{sWv}")
        e(f"s_cmp_lg_u32 s{s0}, 0")
        e("s_cbranch_scc1 L_nogen")
        e(f"v_mov_b32 v10, {WS_G}")
        flag_store(10, vTAG)
        k.label("L_nogen")
    if DEV:
        stamp("end")
        assert len(stamp_names) <= NSTAMP
        e(f"s_lshl3_add_u32 s{s0}, s2, s{sWv}")
        e(f"s_lshl_b32 s{s0}, s{s0}, 7")
        e(f"s_add_u32 s{s0}, s{s0}, {WS_TS}")
        e("s_mov_b64 exec, 1")
        e("v_mov_b32 v10, 0")
        for i in range(len(stamp_names)):
            e(f"v_mov_b32 v11, s{sSTAMP0 + i}")
            e(f"buffer_store_dword v11, v10, s[{SWS}:{SWS + 3}], s{s0} offen offset:{4 * i}")
        e(f"v_mov_b32 v11, s{sABORT}")
        e(f"buffer_store_dword v11, v10, s[{SWS}:{SWS + 3}], s{s0} offen offset:124")
    if SPIN:
        a, b, n = SPIN.split(",")
        e(f"s_cmp_lg_u32 s{sWv}, 0")
        e("s_cbranch_scc1 L_end")
        e(f"s_sub_u32 s{s0}, s{sSTAMP0 + stamp_names.index(b)}, s{sSTAMP0 + stamp_names.index(a)}")
        e(f"s_mul_i32 s{s0}, s{s0}, {n}")
        e(f"s_min_u32 s{s0}, s{s0}, 100000")
        k.label("L_spin")
        e(f"s_memrealtime s[{sSTMP}:{sSTMP + 1}]")
        e("s_waitcnt lgkmcnt(0)")
        e(f"s_sub_u32 s{s1}, s{sSTMP}, s{sSTAMP0 + stamp_names.index('end')}")
        e(f"s_cmp_lt_u32 s{s1}, s{s0}")
        e("s_cbranch_scc1 L_spin")
    if DBG:
        sel = DBG.split(",")
        e(f"s_cmp_lg_u32 s{sT}, 0")
        e("s_cbranch_scc1 L_end")
        e(f"s_load_dwordx2 s[{ST}:{ST + 1}], s[0:1], 72")
        e(f"s_mov_b32 s{ST + 2}, 256")
        e(f"s_mov_b32 s{ST + 3}, 0x20000")
        e("s_mov_b64 exec, -1")
        e("v_mov_b32 v11, 0")
        e(f"s_not_b32 s{s0}, s{sSTAMP0}")
        e(f"v_writelane_b32 v11, s{s0}, 0")
        for i, n in enumerate(sel):
            e(f"v_writelane_b32 v11, s{sSTAMP0 + stamp_names.index(n)}, {i + 1}")
        e(f"v_lshlrev_b32 v10, 2, v{vL}")
        e("s_mov_b64 exec, 0xffff")
        e("s_waitcnt lgkmcnt(0)")
        e(f"buffer_atomic_umax v11, v10, s[{ST}:{ST + 3}], 0 offen")
    k.label("L_end")
    e("s_endpgm")


def main():
    entry()
    e(f"s_cmp_eq_u32 s{sF}, 0")
    e("s_cbranch_scc1 L_f0")
    a_loader()
    e("s_branch L_attn")
    k.label("L_f0")
    a_compute_setup()
    vm0 = k.vm
    e(f"s_bitcmp1_b32 s{sHP}, 0")
    e("s_cbranch_scc1 L_typeV")
    a_compute(0, vm0)
    e("s_branch L_a_done")
    k.label("L_typeV")
    a_compute(1, vm0)
    k.label("L_a_done")
    e("s_barrier")
    stamp("kv_stored")
    q_pass()
    k.label("L_attn")
    kt = {}
    import phase_c
    phase_c.bind(globals())
    extras = phase_c.attn_extras()
    extras.setdefault((15, 0), []).append(lambda toks: red_setup())
    attention(kt, extras)
    range_check()
    k.wait(vm=phase_c.ST_["w1"], lg="all")
    e("s_barrier")
    stamp("attn_done")
    k.label("L_reduce")
    otok = attn_reduce()
    if STOP == "attn":
        k.wait(vm="all")
        flag_store(vOFA, vTAG, local=True)
        stamp("o_flag")
    else:
        phase_c.run(otok)
    finish()
    for ln in k.tail:
        k.L.append(ln)
    kvpoll_routine()
    phase_c.routines()
    slow_path()
    k.label("L_code_end")
    e("s_endpgm")
    body, npad = pad_hazards(k.L, verbose="-v" in sys.argv)
    hdr = open("cdna_kernels/" + NAME + ".s.ref").read().split("\n")
    head = []
    for ln in hdr:
        if ln.startswith("; @launch"):
            head.append(f"; @launch grid=(256,1,1) block=(512,1,1) lds={LDS_SIZE}")
        else:
            head.append(ln)
        if ln.startswith(NAME + "_kernel:"):
            break
    txt = "\n".join(head) + "\n" + "\n".join(("" if l.endswith(":") else "    ") + l for l in body) + f"""
.section .rodata,"a"
.p2align 6
.amdhsa_kernel {NAME}_kernel
  .amdhsa_next_free_vgpr 256
  .amdhsa_next_free_sgpr 102
  .amdhsa_accum_offset 256
  .amdhsa_group_segment_fixed_size 0
  .amdhsa_kernarg_size 88
  .amdhsa_user_sgpr_count 2
  .amdhsa_user_sgpr_kernarg_segment_ptr 1
  .amdhsa_system_sgpr_workgroup_id_x 1
  .amdhsa_float_denorm_mode_32 3
.end_amdhsa_kernel
"""
    out = [a for a in sys.argv[1:] if not a.startswith("-")]
    path = out[0] if out else "k.s"
    open(path, "w").write(txt)
    open(path + ".stamps", "w").write("\n".join(stamp_names))
    print("wrote", path, "lines", len(body), "pads", npad)


if __name__ == "__main__":
    main()
```
